```python
import torch

def _softmax(x, axis=-1):
    return torch.softmax(x, dim=axis)
def _gelu(x):
    return torch.nn.functional.gelu(x, approximate="tanh")
def _silu(x):
    return torch.nn.functional.silu(x)
def _sigmoid(x):
    return torch.sigmoid(x)
def _layernorm(x, axis=-1, eps=1e-5):
    m = x.mean(dim=axis, keepdim=True)
    v = x.var(dim=axis, keepdim=True, unbiased=False)
    return (x - m) / torch.sqrt(v + eps)
def _scatter_add(tgt, idx, src, axis=0):
    return tgt.clone().index_add_(axis, idx, src)
def _segment_sum(src, seg, n):
    out = torch.zeros((n,) + src.shape[1:], dtype=src.dtype)
    return out.index_add_(0, seg, src)
def _pad(x, pw):
    flat = tuple(v for pair in reversed(pw) for v in pair)
    return torch.nn.functional.pad(x, flat)

kernel_name = 'sequential_preLN__spectral_gfnet__glu_gated_glu__prompt'

def setup_inputs():

    _w = (lambda a: (lambda t: t.to(torch.bfloat16) if t.is_floating_point() else t)(torch.as_tensor(a)))
    def _A_setup():
        B, S, D = 1, 2048, 512
        Df = D // 2 + 1
        return {
            "x": _w((lambda *s: torch.randn(*s, dtype=torch.bfloat16) * 0.05)(B, S, D)),
            "w_r": _w((lambda *s: torch.randn(*s, dtype=torch.bfloat16) * 0.4)(S, Df) * 0.02),
            "w_i": _w((lambda *s: torch.randn(*s, dtype=torch.bfloat16) * 0.4)(S, Df) * 0.02),
        }
    _A_in = _A_setup()

    def _B_setup():
        B, S, D, F = 1, 2048, 512, 1792
        return {
            "x": _w((lambda *s: torch.randn(*s, dtype=torch.bfloat16) * 0.05)(B, S, D)),
            "w_gate": _w((lambda *s: torch.randn(*s, dtype=torch.bfloat16) * 0.05)(D, F)),
            "w_up": _w((lambda *s: torch.randn(*s, dtype=torch.bfloat16) * 0.05)(D, F)),
            "w_down": _w((lambda *s: torch.randn(*s, dtype=torch.bfloat16) * 0.05)(F, D)),
        }
    _B_in = _B_setup()

    return {
        "A_x": _A_in["x"],
        "A_w_r": _A_in["w_r"],
        "A_w_i": _A_in["w_i"],
        "B_x": _B_in["x"],
        "B_w_gate": _B_in["w_gate"],
        "B_w_up": _B_in["w_up"],
        "B_w_down": _B_in["w_down"],
    }

def reference(A_x, A_w_r, A_w_i, B_x, B_w_gate, B_w_up, B_w_down):
    def _A_ref(x, w_r, w_i):
        B, S, D = x.shape
        X = (lambda x, axes=(-2,-1): torch.fft.rfft2(x.float(), dim=axes))(x, axes=(-2, -1))
        W = w_r + 1j * w_i
        X = X * W
        y = (lambda x, s, axes=(-2,-1): torch.fft.irfft2(x, s=s, dim=axes).to(torch.bfloat16))(X, (S, D), axes=(-2, -1))
        return y

    def _B_ref(x, w_gate, w_up, w_down):
        g = torch.einsum("bsd,df->bsf", x, w_gate)
        u = torch.einsum("bsd,df->bsf", x, w_up)
        h = _sigmoid(g) * u
        return torch.einsum("bsf,fd->bsd", h, w_down)

    x = A_x
    h = x + _A_ref(_layernorm(x, axis=-1), A_w_r, A_w_i)
    h2 = h + _B_ref(_layernorm(h, axis=-1), B_w_gate, B_w_up, B_w_down)
    return h2
```

```python
import re

_REG = re.compile(r'^(-|abs\(|\|)?([vas])(\d+|\[(\d+):(\d+)\])')


def regs_of(tok):
    tok = tok.strip()
    if tok in ('vcc',):
        return [('s', 106), ('s', 107)]
    if tok == 'vcc_lo':
        return [('s', 106)]
    if tok == 'vcc_hi':
        return [('s', 107)]
    if tok == 'exec':
        return [('s', 126), ('s', 127)]
    if tok == 'm0':
        return [('s', 124)]
    t = tok
    while t[:1] in '-|' and len(t) > 1 and not t[1:2].isdigit():
        t = t[1:]
    if t.startswith('abs('):
        t = t[4:]
    m = re.match(r'^([vas])(\d+)(?![\w\[])', t)
    if m:
        return [(m.group(1), int(m.group(2)))]
    m = re.match(r'^([vas])\[(\d+):(\d+)\]', t)
    if m:
        return [(m.group(1), i) for i in range(int(m.group(2)), int(m.group(3)) + 1)]
    return []


TRANS = ('v_exp_f32', 'v_log_f32', 'v_rcp_f32', 'v_rsq_f32', 'v_sqrt_f32', 'v_sin_f32', 'v_cos_f32',
         'v_rcp_iflag_f32', 'v_exp_f16', 'v_rcp_f16')


def mfma_passes(mn):
    if '32x32x16' in mn or '32x32x8' in mn:
        return 8
    if '16x16x32' in mn or '16x16x16' in mn:
        return 4
    if '32x32x2_f32' in mn:
        return 16
    if '16x16x4_f32' in mn:
        return 8
    raise ValueError(mn)


class Ins:
    __slots__ = ('text', 'mn', 'kind', 'rd', 'wr', 'ws', 'srcc', 'ab', 'passes', 'dpp', 'opsel', 'wide_store',
                 'store_data', 'ldsdma', 'addr_s', 'lanesel', 'const_s')


def split_ops(s):
    out, depth, cur = [], 0, ''
    for ch in s:
        if ch in '[(':
            depth += 1
        if ch in '])':
            depth -= 1
        if ch == ',' and depth == 0:
            out.append(cur.strip())
            cur = ''
        else:
            cur += ch
    if cur.strip():
        out.append(cur.strip())
    return out


def parse(text):
    I = Ins()
    I.text = text
    t = text.split(';')[0].strip()
    parts = t.split(None, 1)
    mn = parts[0]
    rest = parts[1] if len(parts) > 1 else ''
    ops = split_ops(rest)
    mods = ''
    if ops:
        lp = ops[-1].split(None, 1)
        if len(lp) > 1 and not ops[-1].startswith(('vmcnt', 'lgkmcnt', 'expcnt')):
            ops[-1] = lp[0]
            mods = lp[1]
    base = re.sub(r'_(e32|e64|dpp|sdwa)$', '', mn)
    I.mn = base
    I.rd, I.wr = [], []
    I.ws = 1
    I.srcc, I.ab, I.passes = [], [], 0
    I.dpp = ('dpp' in mn) or any(k in mods for k in ('row_', 'quad_perm', 'wave_'))
    I.opsel = ('sdwa' in mn and 'dst_sel:DWORD' not in mods) or base.startswith('v_fma_mixlo') or base.startswith('v_fma_mixhi')
    I.wide_store = False
    I.store_data = []
    I.ldsdma = False
    I.addr_s = []
    I.lanesel = []
    I.const_s = []
    R = [regs_of(o) for o in ops]
    if base.startswith('v_mfma'):
        I.kind = 'mfma'
        I.wr = R[0]
        I.ab = R[1] + R[2]
        I.srcc = R[3]
        I.rd = I.ab + I.srcc
        I.passes = mfma_passes(base)
    elif base.startswith('v_'):
        I.kind = 'trans' if base in TRANS else 'valu'
        if base.startswith('v_cmp'):
            I.wr = R[0] + (regs_of('exec') if base.startswith('v_cmpx') else [])
            I.rd = sum(R[1:], [])
        elif base in ('v_add_co_u32', 'v_sub_co_u32', 'v_subrev_co_u32', 'v_addc_co_u32', 'v_subb_co_u32',
                      'v_mad_u64_u32', 'v_div_scale_f32'):
            I.wr = R[0] + R[1]
            I.rd = sum(R[2:], [])
        elif base.startswith('v_permlane') and 'swap' in base:
            I.wr = R[0] + R[1]
            I.rd = R[0] + R[1]
        elif base in ('v_nop',):
            pass
        else:
            I.wr = R[0]
            I.rd = sum(R[1:], [])
            if base in ('v_fmac_f32', 'v_dot2c_f32_bf16', 'v_dot2c_f32_f16', 'v_pk_fmac_f16', 'v_writelane_b32',
                        'v_fma_mixlo_f16', 'v_fma_mixhi_f16') or I.dpp:
                I.rd = I.rd + R[0]
            if base == 'v_cndmask_b32' and len(ops) == 3:
                I.rd = I.rd + regs_of('vcc')
            if base in ('v_readlane_b32', 'v_writelane_b32'):
                I.lanesel = [r for r in R[2] if r[0] == 's']
        I.const_s = [r for r in I.rd if r[0] == 's']
    elif base.startswith('ds_'):
        I.kind = 'ds'
        if base.startswith('ds_read') or base.startswith('ds_bpermute') or base.startswith('ds_permute') or base.startswith('ds_swizzle'):
            I.wr = R[0]
            I.rd = sum(R[1:], [])
        else:
            I.rd = sum(R, [])
    elif base.startswith('buffer_') or base.startswith('global_'):
        I.kind = 'vmem'
        lds = (' lds' in (' ' + mods)) or base.startswith('global_load_lds')
        if base in ('buffer_wbl2', 'buffer_inv'):
            pass
        elif lds:
            I.ldsdma = True
            I.rd = sum(R, []) + regs_of('m0')
        elif 'load' in base:
            I.wr = R[0]
            I.rd = sum(R[1:], [])
        elif 'atomic' in base:
            I.rd = sum(R, [])
            if 'sc0' in mods:
                I.wr = R[0]
        else:
            I.rd = sum(R, [])
            data = R[0] if base.startswith('buffer_') else R[1]
            if 'x4' in base or 'x3' in base:
                I.wide_store = True
                I.store_data = data
        I.addr_s = [r for r in I.rd if r[0] == 's']
    elif base.startswith('s_load') or base.startswith('s_buffer_load') or base in ('s_memtime', 's_memrealtime'):
        I.kind = 'smem'
        I.wr = R[0]
        I.rd = sum(R[1:], [])
    elif base == 's_nop':
        I.kind = 'nop'
        I.ws = int(ops[0], 0) + 1
    elif base.startswith('s_'):
        I.kind = 'salu'
        if base.startswith(('s_cmp', 's_waitcnt', 's_barrier', 's_branch', 's_cbranch', 's_setprio', 's_endpgm',
                            's_sleep', 's_bitcmp')):
            I.rd = sum(R, [])
        else:
            I.wr = R[0]
            I.rd = sum(R[1:], [])
            if 'saveexec' in base:
                I.wr = I.wr + regs_of('exec')
    else:
        raise ValueError('unknown instruction: ' + text)
    return I


def ov(a, b):
    return bool(set(a) & set(b))


def need(p, c):
    n = 0
    pv = p.kind in ('valu', 'trans')
    cv = c.kind in ('valu', 'trans')
    pw_v = [r for r in p.wr if r[0] != 's']
    pw_s = [r for r in p.wr if r[0] == 's']
    if pv:
        if c.kind == 'mfma' and ov(pw_v, c.rd):
            n = max(n, 2)
        if c.kind == 'mfma' and ov(pw_s, regs_of('exec')):
            n = max(n, 4)
        if cv and c.dpp and ov(pw_v, c.rd):
            n = max(n, 2)
        if cv and c.dpp and ov(pw_s, regs_of('exec')):
            n = max(n, 5)
        if cv and c.mn.startswith('v_permlane') and ov(pw_v, c.rd):
            n = max(n, 2)
        if cv and c.mn.startswith('v_permlane') and ov(pw_s, regs_of('exec')):
            n = max(n, 4)
        if cv and c.mn in ('v_readlane_b32', 'v_readfirstlane_b32') and ov(pw_v, c.rd):
            n = max(n, 1)
        if cv and c.mn in ('v_readlane_b32', 'v_readfirstlane_b32', 'v_writelane_b32') and ov(pw_s, regs_of('exec')):
            n = max(n, 4)
        if cv and ov(pw_s, c.const_s):
            n = max(n, 2)
        if cv and ov(pw_s, c.lanesel):
            n = max(n, 4)
        if c.kind == 'vmem' and ov(pw_s, c.addr_s):
            n = max(n, 5)
        if c.kind in ('salu', 'smem') and ov(pw_s, c.rd):
            n = max(n, 1)
        if p.kind == 'trans' and c.kind in ('valu', 'mfma', 'vmem', 'ds') and ov(pw_v, c.rd):
            n = max(n, 1)
        if p.opsel and cv and (ov(pw_v, c.rd) or ov(pw_v, c.wr)):
            n = max(n, 1)
        if p.mn.startswith('v_dot'):
            if ov(pw_v, c.rd) or ov(pw_v, c.wr):
                same_c = (c.mn == p.mn) and not ov(pw_v, [r for r in c.rd if r not in c.wr])
                if not same_c:
                    n = max(n, 3)
    if p.kind == 'salu' and ov(p.wr, regs_of('m0')) and c.ldsdma:
        n = max(n, 1)
    if p.kind == 'vmem' and p.wide_store and ov(p.store_data, c.wr):
        n = max(n, 2 if cv or c.kind == 'mfma' else 1)
    if p.kind == 'mfma':
        big = {2: 5, 4: 8, 8: 12, 16: 20}[p.passes]
        if c.kind == 'mfma':
            if ov(p.wr, c.ab):
                n = max(n, big)
            if ov(p.wr, c.srcc):
                if p.wr == c.srcc and p.passes == c.passes:
                    n = max(n, 2 if p.passes == 2 else 0)
                else:
                    n = max(n, {2: 4, 4: 6, 8: 10, 16: 18}[p.passes])
            elif ov(p.wr, c.wr):
                n = max(n, big)
        else:
            if ov(p.wr, c.rd) or ov(p.wr, c.wr):
                n = max(n, big)
            if cv and ov(p.srcc, c.wr):
                n = max(n, {2: 1, 4: 3, 8: 7, 16: 15}[p.passes])
    return n


class Asm:
    def __init__(self):
        self.out = []
        self.hist = []
        self.vm = []
        self.lg = []
        self.nops = 0
        self.check_waits = True

    def raw(self, s):
        self.out.append(s)

    def comment(self, s):
        self.out.append('    ; ' + s)

    def label(self, name, reset=False):
        self.out.append(name + ':')
        if reset:
            self.reset()

    def reset(self):
        self.hist = []
        self.vm = []
        self.lg = []

    def _waitcheck(self, I):
        if I.mn == 's_waitcnt':
            m = re.search(r'vmcnt\((\d+)\)', I.text)
            if m:
                n = int(m.group(1))
                while len(self.vm) > n:
                    self.vm.pop(0)
            m = re.search(r'lgkmcnt\((\d+)\)', I.text)
            if m:
                n = int(m.group(1))
                if n == 0:
                    self.lg = []
                elif not any(x[0] for x in self.lg):
                    while len(self.lg) > n:
                        self.lg.pop(0)
            return
        touched = set(I.rd) | set(I.wr)
        if self.check_waits:
            for d in self.vm:
                if touched & set(d):
                    raise RuntimeError('vmcnt hazard: ' + I.text)
            for sm, d in self.lg:
                if touched & set(d):
                    raise RuntimeError('lgkmcnt hazard: ' + I.text)
        if I.kind == 'vmem' and I.mn not in ('buffer_wbl2', 'buffer_inv'):
            self.vm.append(list(I.wr))
            if len(self.vm) > 63:
                raise RuntimeError('more than 63 vmem ops outstanding: ' + I.text)
        elif I.kind == 'ds':
            self.lg.append((False, list(I.wr)))
        elif I.kind == 'smem':
            self.lg.append((True, list(I.wr)))

    def op(self, text):
        for line in text.strip().split('\n'):
            line = line.strip()
            if not line or line.startswith(';'):
                continue
            self._op1(line)

    def _op1(self, text):
        I = parse(text)
        dist = 0
        pad = 0
        for p in reversed(self.hist):
            n = need(p, I)
            if n - dist > pad:
                pad = n - dist
            dist += p.ws
            if dist >= 21:
                break
        while pad > 0:
            k = min(pad, 16)
            N = parse('s_nop %d' % (k - 1))
            self.hist.append(N)
            self.out.append('    s_nop %d' % (k - 1))
            self.nops += k
            pad -= k
        self._waitcheck(I)
        self.hist.append(I)
        if len(self.hist) > 40:
            self.hist = self.hist[-30:]
        self.out.append('    ' + text)
        if I.mn in ('s_branch', 's_endpgm'):
            self.reset()

    def text(self):
        return '\n'.join(self.out) + '\n'


def vr(a, n):
    return 'v%d' % a if n == 1 else 'v[%d:%d]' % (a, a + n - 1)


def ar(a, n):
    return 'a%d' % a if n == 1 else 'a[%d:%d]' % (a, a + n - 1)


def sr(a, n):
    return 's%d' % a if n == 1 else 's[%d:%d]' % (a, a + n - 1)


def f2u(x):
    import struct
    return '0x%08x' % struct.unpack('<I', struct.pack('<f', x))[0]
```

```python
import sys
import math
from asmlib import Asm, vr, ar, sr, f2u

NAME = 'sequential_preLN__spectral_gfnet__glu_gated_glu__prompt'

CS = 8192 + 256
HS = 4096 + 256
ZT = 0x000000
WT = 0x240000
HT = 0x480000
HRES = 0x6C0000
BH = 0x8C0000
WDF = 0xCC0000
STAT = 0xE80000
HG = 0xEC0000
WS_END = HG + 64 * 112 * 1024
assert ZT + 256 * CS <= WT and WT + 256 * CS <= HT and HT + 512 * HS <= HRES
assert HRES + 2048 * 1024 <= BH and BH + 128 * 32768 <= WDF and WDF + 16 * 112 * 1024 <= STAT

KA = dict(x=0, wr=8, wi=16, bx=24, wg=32, wu=40, wd=48, out=56, dbg=64, ws=72)


def srd(a, s, ptr, nbytes):
    if s != ptr:
        a.op(f's_mov_b32 s{s}, s{ptr}')
    a.op(f's_and_b32 s{s+1}, s{ptr+1}, 0xffff')
    a.op(f's_mov_b32 s{s+2}, {nbytes:#x}')
    a.op(f's_mov_b32 s{s+3}, 0x20000')


def kernel_begin(a, name):
    a.raw(f'.globl {name}')
    a.raw('.p2align 8')
    a.raw(f'.type {name},@function')
    a.label(name, reset=True)


def kd(name, vgpr, accum=None, sgpr=96):
    accum = accum if accum is not None else (vgpr + 3) // 4 * 4
    return f""".p2align 6
.amdhsa_kernel {name}
  .amdhsa_next_free_vgpr {vgpr}
  .amdhsa_next_free_sgpr {sgpr}
  .amdhsa_accum_offset {accum}
  .amdhsa_group_segment_fixed_size 0
  .amdhsa_kernarg_size 80
  .amdhsa_user_sgpr_count 2
  .amdhsa_user_sgpr_kernarg_segment_ptr 1
  .amdhsa_system_sgpr_workgroup_id_x 1
  .amdhsa_float_denorm_mode_32 3
  .amdhsa_float_denorm_mode_16_64 3
.end_amdhsa_kernel
"""


class RA:
    def __init__(self, start):
        self.n = start

    def get(self, cnt=1, align=1):
        self.n = (self.n + align - 1) // align * align
        r = self.n
        self.n += cnt
        return r


def lane_ids(a, r):
    lane, n, g = r.get(), r.get(), r.get()
    a.op(f'v_lshrrev_b32 v{g}, 6, v0')
    a.op(f'v_and_b32 v{lane}, 63, v0')
    a.op(f'v_readfirstlane_b32 s3, v{g}')
    a.op(f'v_and_b32 v{n}, 15, v0')
    a.op(f'v_lshrrev_b32 v{g}, 4, v{lane}')
    return lane, n, g


def gen_f32tab(a, r, n, g, types, want_ns):
    t = RA(r.n + 80)
    nf, base, sg = t.get(), t.get(), t.get()
    ang = t.get(4)
    co = t.get(4)
    si = t.get(4)
    a.op(f'v_cvt_f32_u32 v{nf}, v{n}')
    a.op(f'v_cvt_f32_u32 v{base}, v{g}')
    a.op(f'v_mul_f32 v{nf}, {f2u(1/32)}, v{nf}')
    a.op(f'v_mul_f32 v{base}, 4.0, v{base}')
    a.op(f'v_mul_f32 v{ang}, v{nf}, v{base}')
    for j in range(1, 4):
        a.op(f'v_add_f32 v{ang+j}, v{ang+j-1}, v{nf}')
    a.op(f'v_and_b32 v{sg}, 1, v{n}')
    a.op(f'v_mul_u32_u24 v{sg}, 0x8000, v{sg}')
    a.op(f'v_lshl_or_b32 v{sg}, v{sg}, 16, v{sg}')
    for j in range(4):
        a.op(f'v_cos_f32 v{co+j}, v{ang+j}')
        a.op(f'v_sin_f32 v{si+j}, v{ang+j}')
    res = {}
    for ty in types:
        d = {}
        names = ['C', 'S'] + (['N'] if want_ns else [])
        for nm in names:
            d[nm] = [r.get(4, 4), r.get(4, 4)]
        cvt = 'v_cvt_pk_f16_f32' if ty == 'f16' else 'v_cvt_pk_bf16_f32'
        for nm, src in (('C', co), ('S', si)):
            b0 = d[nm][0]
            a.op(f'{cvt} v{b0}, v{src}, v{src+1}')
            a.op(f'{cvt} v{b0+1}, v{src+2}, v{src+3}')
        if want_ns:
            for k in range(2):
                a.op(f'v_xor_b32 v{d["N"][0]+k}, 0x80008000, v{d["S"][0]+k}')
        for nm in names:
            b0, b1 = d[nm]
            for k in range(2):
                a.op(f'v_xor_b32 v{b0+2+k}, v{sg}, v{b0+k}')
            for k in range(4):
                a.op(f'v_xor_b32 v{b1+k}, 0x80000000, v{b0+k}')
        res[ty] = d
    return res


def dpp_reduce(a, regs):
    steps = ['row_shr:1 row_mask:0xf bank_mask:0xf bound_ctrl:0',
             'row_shr:2 row_mask:0xf bank_mask:0xf bound_ctrl:0',
             'row_shr:4 row_mask:0xf bank_mask:0xf bound_ctrl:0',
             'row_shr:8 row_mask:0xf bank_mask:0xf bound_ctrl:0',
             'row_bcast:15 row_mask:0xa bank_mask:0xf',
             'row_bcast:31 row_mask:0xc bank_mask:0xf']
    for st in steps:
        for x in regs:
            a.op(f'v_add_f32_dpp v{x}, v{x}, v{x} {st}')


class RowFFT:
    def __init__(self, a, r, n, g):
        self.a = a
        tab = gen_f32tab(a, r, n, g, ['f16'], True)['f16']
        self.C, self.N = tab['C'], tab['N']
        self.twc = r.get(8, 2)
        self.tws = r.get(8, 2)
        self.A2 = r.get(4, 4)
        self.sc = r.get(4, 2)
        t = RA(r.n + 8)
        k1f, d2f, st, ph = t.get(), t.get(), t.get(), t.get()
        ang = t.get(8)
        a.op(f'v_cvt_f32_u32 v{k1f}, v{n}')
        a.op(f'v_cvt_f32_u32 v{d2f}, v{g}')
        a.op(f'v_cmp_eq_u32 vcc, 0, v{n}')
        a.op(f'v_mul_f32 v{d2f}, 4.0, v{d2f}')
        a.op(f'v_add_f32 v{st}, {f2u(16.0)}, v{k1f}')
        a.op(f'v_mov_b32 v{ph}, {f2u(256.0)}')
        a.op(f'v_cndmask_b32 v{k1f}, v{k1f}, v{ph}, vcc')
        a.op(f'v_mul_f32 v{st}, {f2u(1/512)}, v{st}')
        a.op(f'v_mul_f32 v{k1f}, {f2u(1/512)}, v{k1f}')
        a.op(f'v_mul_f32 v{ang}, v{k1f}, v{d2f}')
        a.op(f'v_mul_f32 v{ang+4}, v{st}, v{d2f}')
        for i in range(1, 4):
            a.op(f'v_add_f32 v{ang+i}, v{ang+i-1}, v{k1f}')
            a.op(f'v_add_f32 v{ang+4+i}, v{ang+4+i-1}, v{st}')
        for i in range(8):
            a.op(f'v_cos_f32 v{self.twc+i}, v{ang+i}')
            a.op(f'v_sin_f32 v{self.tws+i}, v{ang+i}')
        a.op(f'v_mov_b32 v{ph}, -1.0')
        a.op(f'v_cndmask_b32 v{self.sc+1}, 1.0, v{ph}, vcc')
        a.op(f'v_cndmask_b32 v{self.sc+3}, 1.0, v{ph}, vcc')
        a.op(f'v_mov_b32 v{self.sc+2}, 1.0')
        a.op(f'v_lshl_or_b32 v{st}, v{g}, 4, v{n}')
        a.op(f'v_cmp_eq_u32 vcc, 0, v{st}')
        a.op(f'v_mov_b32 v{ph}, {f2u(math.sqrt(0.5))}')
        a.op(f'v_cndmask_b32 v{self.sc}, 1.0, v{ph}, vcc')
        a.op(f'v_lshrrev_b32 v{st}, 1, v{n}')
        a.op(f'v_and_b32 v{ph}, 1, v{n}')
        a.op(f'v_cvt_f32_u32 v{st}, v{st}')
        a.op(f'v_cvt_f32_u32 v{ph}, v{ph}')
        a.op(f'v_mul_f32 v{st}, {f2u(1/16)}, v{st}')
        a.op(f'v_mul_f32 v{ph}, {f2u(0.25)}, v{ph}')
        a.op(f'v_fma_f32 v{ang}, v{st}, v{d2f}, v{ph}')
        for i in range(1, 4):
            a.op(f'v_add_f32 v{ang+i}, v{ang+i-1}, v{st}')
        for i in range(4):
            a.op(f'v_sin_f32 v{ang+4+i}, v{ang+i}')
            a.op(f'v_cos_f32 v{ang+i}, v{ang+i}')
        for i in range(4):
            a.op(f'v_cvt_pk_f16_f32 v{self.A2+i}, v{ang+2*i}, v{ang+2*i+1}')

    def run(self, xs, d1s, b2s, outs):
        a = self.a
        for x, d1 in zip(xs, d1s):
            for T in range(2):
                a.op(f'v_mfma_f32_16x16x32_f16 {vr(d1+8*T,4)}, {vr(x,4)}, {vr(self.C[T],4)}, 0')
                a.op(f'v_mfma_f32_16x16x32_f16 {vr(d1+8*T+4,4)}, {vr(x,4)}, {vr(self.N[T],4)}, 0')
        for d1, b2, o in zip(d1s, b2s, outs):
            for T in range(2):
                re, im = d1 + 8 * T, d1 + 8 * T + 4
                for h in range(2):
                    c = vr(self.twc + 4 * T + 2 * h, 2)
                    a.op(f'v_pk_mul_f32 {vr(o+2*h,2)}, {vr(re+2*h,2)}, {c}')
                    a.op(f'v_pk_mul_f32 {vr(o+4+2*h,2)}, {vr(im+2*h,2)}, {c}')
                for h in range(2):
                    s = vr(self.tws + 4 * T + 2 * h, 2)
                    a.op(f'v_pk_fma_f32 {vr(o+2*h,2)}, {vr(im+2*h,2)}, {s}, {vr(o+2*h,2)}')
                    a.op(f'v_pk_fma_f32 {vr(o+4+2*h,2)}, {vr(re+2*h,2)}, {s}, {vr(o+4+2*h,2)} neg_lo:[1,0,0] neg_hi:[1,0,0]')
                for k in range(4):
                    a.op(f'v_cvt_pk_f16_f32 v{b2+4*T+k}, v{o+2*k}, v{o+2*k+1}')
        for b2, o in zip(b2s, outs):
            for T in range(2):
                a.op(f'v_mfma_f32_16x16x32_f16 {vr(o+4*T,4)}, {vr(self.A2,4)}, {vr(b2+4*T,4)}, 0')


def gen_k1(a):
    kernel_begin(a, 'k1_kernel')
    a.op('s_cmp_ge_u32 s2, 624')
    a.op('s_cbranch_scc1 k1_done')
    a.op('s_cmp_ge_u32 s2, 512')
    a.op('s_cbranch_scc1 k1_jobd')
    a.op('s_and_b32 s4, s2, 7')
    a.op('s_lshl_b32 s4, s4, 5')
    a.op('s_bfe_u32 s5, s2, 0x50003')
    a.op('s_add_u32 s4, s4, s5')
    a.op('s_cmp_ge_u32 s2, 256')
    a.op('s_cbranch_scc1 k1_jobc')
    a.op(f's_load_dwordx2 s[8:9], s[0:1], {KA["x"]}')
    a.op(f's_load_dwordx2 s[12:13], s[0:1], {KA["ws"]}')
    r = RA(1)
    lane, n, g = lane_ids(a, r)
    voff = r.get()
    a.op(f'v_lshlrev_b32 v{voff}, 4, v{lane}')
    a.op('s_lshl_b32 s5, s4, 3')
    a.op('s_lshl_b32 s6, s3, 1')
    a.op('s_add_u32 s5, s5, s6')
    a.op('s_lshl_b32 s6, s5, 10')
    a.op('s_lshl_b32 s7, s3, 11')
    a.op('s_mov_b32 m0, s7')
    a.op('s_waitcnt lgkmcnt(0)')
    srd(a, 8, 8, 2048 * 1024)
    a.op(f'buffer_load_dwordx4 v{voff}, s[8:11], s6 offen lds')
    a.op(f'buffer_load_dwordx4 v{voff}, s[8:11], s6 offen offset:1024 lds')
    srd(a, 12, 12, WS_END)
    fft = RowFFT(a, r, n, g)
    raw = [r.get(4, 4), r.get(4, 4)]
    xf = [r.get(8, 4), r.get(8, 4)]
    d1 = [r.get(16, 4), r.get(16, 4)]
    b2 = [r.get(8, 4), r.get(8, 4)]
    st = r.get(8, 2)
    ad, ones, ad2, ad3 = r.get(), r.get(), r.get(), r.get()
    a.op(f'v_lshl_add_u32 v{ad}, v{lane}, 3, s7')
    a.op(f'v_mov_b32 v{ones}, 0x3f803f80')
    a.op(f'v_lshl_add_u32 v{ad2}, v{lane}, 5, s7')
    a.op(f'v_lshlrev_b32 v{ad3}, 3, v0')
    a.op('s_waitcnt vmcnt(0)')
    for k in range(2):
        a.op(f'ds_read_b64_tr_b16 {vr(raw[k],2)}, v{ad} offset:{1024*k}')
        a.op(f'ds_read_b64_tr_b16 {vr(raw[k]+2,2)}, v{ad} offset:{1024*k+512}')
    s0, s1 = st, st + 1
    a.op(f'v_mov_b32 v{s0}, 0')
    a.op(f'v_mov_b32 v{s1}, 0')
    a.op('s_waitcnt lgkmcnt(0)')
    for i in range(4):
        for k in range(2):
            a.op(f'v_dot2_f32_bf16 v{st+k}, v{raw[k]+i}, v{ones}, v{st+k}')
    for i in range(4):
        for k in range(2):
            a.op(f'v_lshlrev_b32 v{xf[k]+2*i}, 16, v{raw[k]+i}')
            a.op(f'v_and_b32 v{xf[k]+2*i+1}, 0xffff0000, v{raw[k]+i}')
    dpp_reduce(a, [s0, s1])
    a.op(f'v_readlane_b32 s20, v{s0}, 63')
    a.op(f'v_readlane_b32 s21, v{s1}, 63')
    mean = st + 2
    sd = st + 4
    sc_ = st + 6
    a.op(f'v_mov_b32 v{sc_}, {f2u(1/512)}')
    a.op(f'v_mul_f32 v{mean}, s20, v{sc_}')
    a.op(f'v_mul_f32 v{mean+1}, s21, v{sc_}')
    for k in range(2):
        for i in range(8):
            a.op(f'v_sub_f32 v{xf[k]+i}, v{xf[k]+i}, v{mean+k}')
    for i in range(8):
        for k in range(2):
            if i == 0:
                a.op(f'v_mul_f32 v{st+k}, v{xf[k]}, v{xf[k]}')
            else:
                a.op(f'v_fmac_f32 v{st+k}, v{xf[k]+i}, v{xf[k]+i}')
    dpp_reduce(a, [s0, s1])
    a.op(f'v_readlane_b32 s20, v{s0}, 63')
    a.op(f'v_readlane_b32 s21, v{s1}, 63')
    a.op(f'v_mov_b32 v{sc_+1}, {f2u(1e-5)}')
    a.op(f'v_fma_f32 v{sd}, s20, v{sc_}, v{sc_+1}')
    a.op(f'v_fma_f32 v{sd+1}, s21, v{sc_}, v{sc_+1}')
    a.op(f'v_rsq_f32 v{s0}, v{sd}')
    a.op(f'v_rsq_f32 v{s1}, v{sd+1}')
    a.op(f'v_mul_f32 v{sd}, v{sd}, v{s0}')
    a.op(f'v_mul_f32 v{sd+1}, v{sd+1}, v{s1}')
    a.op(f'v_mul_f32 v{s0}, {f2u(1/16)}, v{s0}')
    a.op(f'v_mul_f32 v{s1}, {f2u(1/16)}, v{s1}')
    for k in range(2):
        for i in range(8):
            a.op(f'v_mul_f32 v{xf[k]+i}, v{xf[k]+i}, v{st+k}')
        for i in range(4):
            a.op(f'v_cvt_pk_f16_f32 v{raw[k]+i}, v{xf[k]+2*i}, v{xf[k]+2*i+1}')
    a.op('s_lshl_b32 s6, s5, 2')
    a.op(f's_add_u32 s6, s6, {STAT:#x}')
    a.op(f'v_mov_b32 v{sc_}, 0')
    a.op('s_mov_b64 exec, 1')
    a.op(f'buffer_store_dwordx2 {vr(mean,2)}, v{sc_}, s[12:15], s6 offen')
    a.op(f's_add_u32 s6, s6, 8192')
    a.op(f'buffer_store_dwordx2 {vr(sd,2)}, v{sc_}, s[12:15], s6 offen')
    a.op('s_mov_b64 exec, -1')
    fft.run(raw, d1, b2, xf)
    for k in range(2):
        for h in range(2):
            a.op(f'v_pk_mul_f32 {vr(xf[k]+2*h,2)}, {vr(xf[k]+2*h,2)}, {vr(fft.sc+2*h,2)}')
    pk = b2[0]
    for e in range(8):
        a.op(f'v_cvt_pk_f16_f32 v{pk+e}, v{xf[0]+e}, v{xf[1]+e}')
    a.op(f'ds_write_b128 v{ad2}, {vr(pk,4)} offset:8192')
    a.op(f'ds_write_b128 v{ad2}, {vr(pk+4,4)} offset:8208')
    a.op(f's_mov_b32 s16, {CS}')
    a.op(f'v_mul_lo_u32 v{voff}, v0, s16')
    a.op('s_lshl_b32 s6, s4, 5')
    if ZT:
        a.op(f's_add_u32 s6, s6, {ZT:#x}')
    a.op(f'v_add_u32 v{ad}, 4, v{ad3}')
    a.op('s_waitcnt lgkmcnt(0)')
    a.op('s_barrier')
    o = d1[0]
    a.op(f'ds_read2st64_b32 {vr(o,2)}, v{ad3} offset0:32 offset1:40')
    a.op(f'ds_read2st64_b32 {vr(o+2,2)}, v{ad3} offset0:48 offset1:56')
    a.op(f'ds_read2st64_b32 {vr(o+4,2)}, v{ad} offset0:32 offset1:40')
    a.op(f'ds_read2st64_b32 {vr(o+6,2)}, v{ad} offset0:48 offset1:56')
    a.op('s_waitcnt lgkmcnt(2)')
    a.op(f'buffer_store_dwordx4 {vr(o,4)}, v{voff}, s[12:15], s6 offen')
    a.op('s_waitcnt lgkmcnt(0)')
    a.op(f'buffer_store_dwordx4 {vr(o+4,4)}, v{voff}, s[12:15], s6 offen offset:16')
    a.op('s_endpgm')
    k1_v = r.n + 8
    a.label('k1_jobc', reset=True)
    a.op(f's_load_dwordx4 s[8:11], s[0:1], {KA["wr"]}')
    a.op(f's_load_dwordx2 s[12:13], s[0:1], {KA["ws"]}')
    a.op('v_lshrrev_b32 v1, 6, v0')
    a.op('v_lshlrev_b32 v2, 4, v0')
    a.op('v_readfirstlane_b32 s3, v1')
    a.op('s_mul_i32 s6, s4, 4112')
    a.op('s_lshl_b32 s7, s3, 10')
    a.op('s_mov_b32 m0, s7')
    a.op('s_waitcnt lgkmcnt(0)')
    srd(a, 16, 10, 2048 * 514)
    srd(a, 8, 8, 2048 * 514)
    a.op('buffer_load_dwordx4 v2, s[8:11], s6 offen lds')
    a.op('s_add_u32 s7, s7, 4352')
    a.op('s_mov_b32 m0, s7')
    a.op('v_mov_b32 v3, 4096')
    a.op('buffer_load_dwordx4 v2, s[16:19], s6 offen lds')
    a.op('s_mov_b64 exec, 1')
    a.op('s_mov_b32 m0, 4096')
    a.op('s_nop 0')
    a.op('buffer_load_dwordx4 v3, s[8:11], s6 offen lds')
    a.op('s_mov_b32 m0, 8448')
    a.op('s_nop 0')
    a.op('buffer_load_dwordx4 v3, s[16:19], s6 offen lds')
    a.op('s_mov_b64 exec, -1')
    srd(a, 12, 12, WS_END)
    a.op('v_bfe_u32 v4, v0, 2, 4')
    a.op('v_bfe_u32 v5, v0, 1, 1')
    a.op('v_lshl_add_u32 v4, v5, 4, v4')
    a.op('v_and_b32 v5, 1, v0')
    a.op('v_lshl_add_u32 v5, v1, 1, v5')
    a.op('v_lshlrev_b32 v5, 5, v5')
    a.op('v_cmp_eq_u32 vcc, 0, v4')
    a.op('v_add_u32 v4, v4, v5')
    a.op('v_sub_u32 v5, 0x100, v5')
    a.op('v_cndmask_b32 v4, v4, v5, vcc')
    a.op('v_lshlrev_b32 v4, 1, v4')
    a.op(f's_mov_b32 s16, {CS}')
    a.op('v_mul_lo_u32 v6, v0, s16')
    a.op('s_lshl_b32 s6, s4, 5')
    a.op(f's_add_u32 s6, s6, {WT:#x}')
    a.op('s_waitcnt vmcnt(0)')
    a.op('s_barrier')
    for rr in range(8):
        a.op(f'ds_read_u16 v{8+rr}, v4 offset:{rr*514}')
        a.op(f'ds_read_u16 v{16+rr}, v4 offset:{4352+rr*514}')
        if rr == 6:
            a.op('s_waitcnt lgkmcnt(6)')
            for q in range(4):
                a.op(f'v_lshl_or_b32 v{8+q}, v{16+q}, 16, v{8+q}')
            a.op('buffer_store_dwordx4 v[8:11], v6, s[12:15], s6 offen')
    a.op('s_waitcnt lgkmcnt(0)')
    for q in range(4, 8):
        a.op(f'v_lshl_or_b32 v{8+q}, v{16+q}, 16, v{8+q}')
    a.op('buffer_store_dwordx4 v[12:15], v6, s[12:15], s6 offen offset:16')
    a.op('s_endpgm')
    a.label('k1_jobd', reset=True)
    a.op(f's_load_dwordx2 s[8:9], s[0:1], {KA["wd"]}')
    a.op(f's_load_dwordx2 s[12:13], s[0:1], {KA["ws"]}')
    a.op('s_sub_u32 s4, s2, 512')
    a.op('v_lshrrev_b32 v1, 6, v0')
    a.op('v_and_b32 v2, 63, v0')
    a.op('v_readfirstlane_b32 s3, v1')
    a.op('v_bfe_u32 v3, v2, 2, 2')
    a.op('v_lshlrev_b32 v3, 10, v3')
    a.op('v_lshrrev_b32 v4, 4, v2')
    a.op('v_lshl_add_u32 v3, v4, 6, v3')
    a.op('v_and_b32 v5, 3, v2')
    a.op('v_lshl_add_u32 v3, v5, 4, v3')
    a.op('s_lshl_b32 s6, s4, 14')
    a.op('s_lshl_b32 s7, s3, 8')
    a.op('s_add_u32 s6, s6, s7')
    a.op('s_lshl_b32 s7, s3, 12')
    a.op('s_waitcnt lgkmcnt(0)')
    srd(a, 8, 8, 1792 * 1024)
    for q in range(4):
        a.op(f's_add_u32 m0, s7, {1024*q}')
        a.op(f's_add_u32 s16, s6, {4096*q}')
        a.op('buffer_load_dwordx4 v3, s[8:11], s16 offen lds')
    srd(a, 12, 12, WS_END)
    a.op('v_lshrrev_b32 v6, 1, v4')
    a.op('v_lshlrev_b32 v6, 11, v6')
    a.op('v_bfe_u32 v7, v2, 2, 2')
    a.op('v_lshl_add_u32 v6, v7, 6, v6')
    a.op('v_and_b32 v7, 1, v5')
    a.op('v_lshl_add_u32 v6, v7, 5, v6')
    a.op('v_and_b32 v7, 1, v4')
    a.op('v_lshl_add_u32 v6, v7, 4, v6')
    a.op('v_lshrrev_b32 v7, 1, v5')
    a.op('v_lshl_add_u32 v6, v7, 3, v6')
    a.op('v_add_u32 v6, s7, v6')
    a.op('v_lshlrev_b32 v7, 4, v2')
    a.op('s_mul_i32 s6, s3, 448')
    a.op('s_add_u32 s6, s6, s4')
    a.op('s_lshl_b32 s6, s6, 10')
    a.op(f's_add_u32 s6, s6, {WDF:#x}')
    a.op('s_waitcnt vmcnt(0)')
    for nt in range(4):
        a.op(f'ds_read_b64_tr_b16 {vr(8+4*nt,2)}, v6 offset:{nt*256}')
        a.op(f'ds_read_b64_tr_b16 {vr(8+4*nt+2,2)}, v6 offset:{nt*256+1024}')
    for nt in range(4):
        a.op(f's_waitcnt lgkmcnt({6-2*nt})')
        a.op(f'buffer_store_dwordx4 {vr(8+4*nt,4)}, v7, s[12:15], s6 offen')
        if nt < 3:
            a.op(f's_add_u32 s6, s6, {112*1024}')
    a.label('k1_done')
    a.op('s_endpgm')
    return max(k1_v, 120)


def gen_k2(a):
    kernel_begin(a, 'k2_kernel')
    a.op('s_cmp_ge_u32 s2, 512')
    a.op('s_cbranch_scc1 k2_done')
    a.op('s_cmp_ge_u32 s2, 256')
    a.op('s_cbranch_scc1 k2_jobb')
    a.op(f's_load_dwordx2 s[12:13], s[0:1], {KA["ws"]}')
    r = RA(1)
    lane, n, g = lane_ids(a, r)
    p, t0, t1, t2 = r.get(), r.get(), r.get(), r.get()
    zn = r.get(8, 4)
    sdv = r.get(8, 4)
    wv = r.get(8, 4)
    a.op(f'v_lshl_add_u32 v{p}, s3, 4, v{n}')
    a.op(f'v_lshl_add_u32 v{t0}, v{p}, 2, v{g}')
    a.op(f'v_lshlrev_b32 v{t0}, 5, v{t0}')
    a.op(f'v_lshlrev_b32 v{t1}, 10, v{g}')
    a.op(f'v_lshl_add_u32 v{t1}, v{p}, 2, v{t1}')
    a.op(f's_mul_i32 s4, s2, {CS}')
    a.op(f's_add_u32 s5, s4, {WT:#x}')
    a.op(f's_add_u32 s6, s5, 4096')
    if ZT:
        a.op(f's_add_u32 s4, s4, {ZT:#x}')
    a.op(f's_mov_b32 s7, {STAT+8192:#x}')
    a.op('s_waitcnt lgkmcnt(0)')
    srd(a, 12, 12, WS_END)
    a.op(f'buffer_load_dwordx4 {vr(zn,4)}, v{t0}, s[12:15], s4 offen')
    a.op(f'buffer_load_dwordx4 {vr(zn+4,4)}, v{t0}, s[12:15], s4 offen offset:16')
    for mt in range(2):
        for i in range(4):
            a.op(f'buffer_load_dword v{wv+4*mt+i}, v{t1}, s[12:15], s{5+mt} offen offset:{256*i}')
    a.op(f'buffer_load_dwordx4 {vr(sdv,4)}, v{t0}, s[12:15], s7 offen')
    a.op(f'buffer_load_dwordx4 {vr(sdv+4,4)}, v{t0}, s[12:15], s7 offen offset:16')
    f32 = gen_f32tab(a, r, n, g, ['f16', 'bf16'], True)
    F = {}
    for ty in ('f16', 'bf16'):
        F[ty] = {nm: [r.get(4, 4), r.get(4, 4)] for nm in 'CSN'}
    twc = r.get(8, 2)
    tws = r.get(8, 2)
    za = r.get(32, 4)
    d = r.get(16, 4)
    e = r.get(16, 4)
    bo = r.get(8, 4)
    wf = r.get(16, 2)
    aw1, ard, aw2, ost = r.get(), r.get(), r.get(), r.get()
    t = RA(za)
    pf, gf, sg = t.get(), t.get(), t.get()
    ang = t.get(8)
    co = t.get(8)
    si = t.get(8)
    a.op(f'v_cvt_f32_u32 v{pf}, v{p}')
    a.op(f'v_cvt_f32_u32 v{gf}, v{g}')
    a.op(f'v_mul_f32 v{pf}, {f2u(1/64)}, v{pf}')
    a.op(f'v_mul_f32 v{gf}, 4.0, v{gf}')
    a.op(f'v_mul_f32 v{ang}, v{pf}, v{gf}')
    a.op(f'v_fmamk_f32 v{ang+4}, v{pf}, {f2u(16.0)}, v{ang}')
    for i in range(1, 4):
        a.op(f'v_add_f32 v{ang+i}, v{ang+i-1}, v{pf}')
        a.op(f'v_add_f32 v{ang+4+i}, v{ang+4+i-1}, v{pf}')
    a.op(f'v_and_b32 v{sg}, 1, v{n}')
    a.op(f'v_mul_u32_u24 v{sg}, 0x8000, v{sg}')
    a.op(f'v_lshl_or_b32 v{sg}, v{sg}, 16, v{sg}')
    for j in range(8):
        a.op(f'v_cos_f32 v{co+j}, v{ang+j}')
        a.op(f'v_sin_f32 v{si+j}, v{ang+j}')
    for ty in ('f16', 'bf16'):
        cvt = 'v_cvt_pk_f16_f32' if ty == 'f16' else 'v_cvt_pk_bf16_f32'
        for k in range(4):
            a.op(f'{cvt} v{F[ty]["C"][0]+k}, v{co+2*k}, v{co+2*k+1}')
            a.op(f'{cvt} v{F[ty]["S"][0]+k}, v{si+2*k}, v{si+2*k+1}')
        for k in range(4):
            a.op(f'v_xor_b32 v{F[ty]["N"][0]+k}, 0x80008000, v{F[ty]["S"][0]+k}')
        for nm in 'CSN':
            for k in range(4):
                a.op(f'v_xor_b32 v{F[ty][nm][1]+k}, v{sg}, v{F[ty][nm][0]+k}')
    for j in range(8):
        a.op(f'v_mul_f32 v{ang+j}, {f2u(1/32)}, v{ang+j}')
    for j in range(8):
        a.op(f'v_cos_f32 v{twc+j}, v{ang+j}')
        a.op(f'v_sin_f32 v{tws+j}, v{ang+j}')
    alpha = f2u(2.0 ** -5.5)
    for j in range(8):
        a.op(f'v_mul_f32 v{twc+j}, {alpha}, v{twc+j}')
        a.op(f'v_mul_f32 v{tws+j}, {alpha}, v{tws+j}')
    a.op(f'v_lshrrev_b32 v{t2}, 1, v{g}')
    a.op(f'v_lshlrev_b32 v{aw1}, 11, v{t2}')
    a.op(f'v_lshl_add_u32 v{aw1}, v{p}, 5, v{aw1}')
    a.op(f'v_lshlrev_b32 v{aw2}, 3, v{t2}')
    a.op(f'v_lshl_add_u32 v{aw2}, v{p}, 5, v{aw2}')
    a.op(f'v_and_b32 v{t2}, 1, v{g}')
    a.op(f'v_lshl_add_u32 v{aw1}, v{t2}, 4, v{aw1}')
    a.op(f'v_lshl_add_u32 v{aw2}, v{t2}, 11, v{aw2}')
    a.op(f'v_lshlrev_b32 v{ard}, 3, v{lane}')
    a.op(f'v_lshrrev_b32 v{ost}, 1, v{t0}')
    a.op(f's_mul_i32 s8, s2, {2*HS}')
    a.op(f's_add_u32 s8, s8, {HT:#x}')
    a.op(f's_add_u32 s9, s8, {HS}')
    a.op('s_waitcnt vmcnt(10)')
    a.op(f'ds_write_b128 v{aw1}, {vr(zn,4)}')
    a.op(f'ds_write_b128 v{aw1}, {vr(zn+4,4)} offset:4096')
    a.op('s_waitcnt lgkmcnt(0)')
    a.op('s_barrier')

    def A(mt, ks, part):
        return za + ((mt * 2 + ks) * 2 + part) * 4

    def D(mt, part):
        return d + (mt * 2 + part) * 4

    def stage64(base, ty, inverse):
        mf = f'v_mfma_f32_16x16x32_{ty}'
        order = [(mt, ks, part) for mt in range(2) for ks in range(2) for part in range(2)]
        for (mt, ks, part) in order:
            for q in range(2):
                a.op(f'ds_read_b64_tr_b16 {vr(A(mt,ks,part)+2*q,2)}, v{ard} offset:{base+part*4096+mt*2048+ks*1024+q*512}')
        T = F[ty]
        sp, sm = ('N', 'S') if inverse else ('S', 'N')
        left = 16
        for mt in range(2):
            for ks in range(2):
                left -= 2
                a.op(f's_waitcnt lgkmcnt({min(left,15)})')
                c0 = '0' if ks == 0 else None
                a.op(f'{mf} {vr(D(mt,0),4)}, {vr(A(mt,ks,0),4)}, {vr(T["C"][ks],4)}, {c0 or vr(D(mt,0),4)}')
                a.op(f'{mf} {vr(D(mt,1),4)}, {vr(A(mt,ks,0),4)}, {vr(T[sm][ks],4)}, {c0 or vr(D(mt,1),4)}')
                left -= 2
                a.op(f's_waitcnt lgkmcnt({left})')
                a.op(f'{mf} {vr(D(mt,0),4)}, {vr(A(mt,ks,1),4)}, {vr(T[sp][ks],4)}, {vr(D(mt,0),4)}')
                a.op(f'{mf} {vr(D(mt,1),4)}, {vr(A(mt,ks,1),4)}, {vr(T["C"][ks],4)}, {vr(D(mt,1),4)}')

    def cmul(cr, ci, conj_neg, ty, dst):
        cvt = 'v_cvt_pk_f16_f32' if ty == 'f16' else 'v_cvt_pk_bf16_f32'
        neg = ' neg_lo:[1,0,0] neg_hi:[1,0,0]'
        for mt in range(2):
            re, im = D(mt, 0), D(mt, 1)
            er, ei = e + 8 * mt, e + 8 * mt + 4
            for h in range(2):
                c = vr(cr + 4 * mt + 2 * h, 2)
                a.op(f'v_pk_mul_f32 {vr(er+2*h,2)}, {vr(re+2*h,2)}, {c}')
                a.op(f'v_pk_mul_f32 {vr(ei+2*h,2)}, {vr(im+2*h,2)}, {c}')
            for h in range(2):
                s = vr(ci + 4 * mt + 2 * h, 2)
                a.op(f'v_pk_fma_f32 {vr(er+2*h,2)}, {vr(im+2*h,2)}, {s}, {vr(er+2*h,2)}' + ('' if conj_neg else neg))
                a.op(f'v_pk_fma_f32 {vr(ei+2*h,2)}, {vr(re+2*h,2)}, {s}, {vr(ei+2*h,2)}' + (neg if conj_neg else ''))
            for part, src in ((0, er), (1, ei)):
                for h in range(2):
                    a.op(f'{cvt} v{dst(mt,part)+h}, v{src+2*h}, v{src+2*h+1}')

    def stage32(ty, inverse):
        mf = f'v_mfma_f32_16x16x32_{ty}'
        T = f32[ty]
        sp, sm = ('N', 'S') if inverse else ('S', 'N')
        br, bi = vr(bo, 4), vr(bo + 4, 4)
        for mt in range(2):
            a.op(f'{mf} {vr(D(mt,0),4)}, {vr(T["C"][mt],4)}, {br}, 0')
            a.op(f'{mf} {vr(D(mt,1),4)}, {vr(T[sm][mt],4)}, {br}, 0')
        for mt in range(2):
            a.op(f'{mf} {vr(D(mt,0),4)}, {vr(T[sp][mt],4)}, {bi}, {vr(D(mt,0),4)}')
            a.op(f'{mf} {vr(D(mt,1),4)}, {vr(T["C"][mt],4)}, {bi}, {vr(D(mt,1),4)}')

    bdst = lambda mt, part: bo + 4 * part + 2 * mt
    stage64(0, 'f16', False)
    a.op('s_waitcnt vmcnt(2)')
    for j in range(8):
        a.op(f'v_lshlrev_b32 v{wf+j}, 16, v{wv+j}')
        a.op(f'v_and_b32 v{wf+8+j}, 0xffff0000, v{wv+j}')
    cmul(twc, tws, True, 'f16', bdst)
    stage32('f16', False)
    cmul(wf, wf + 8, False, 'bf16', bdst)
    stage32('bf16', True)
    cmul(twc, tws, False, 'bf16', bdst)
    for part in range(2):
        for mt in range(2):
            a.op(f'ds_write_b64 v{aw2}, {vr(bdst(mt,part),2)} offset:{8192+part*4096+mt*16}')
    a.op('s_waitcnt lgkmcnt(0)')
    a.op('s_barrier')
    stage64(8192, 'bf16', True)
    a.op('s_waitcnt vmcnt(0)')
    for part in range(2):
        for mt in range(2):
            for i in range(4):
                k = 4 * mt + i
                a.op(f'v_fma_mix_f32 v{e+8*part+k}, v{zn+4*part+k//2}, v{sdv+k}, v{D(mt,part)+i} op_sel:[{k&1},0,0] op_sel_hi:[1,0,0]')
    for part in range(2):
        for k in range(4):
            a.op(f'v_cvt_pk_bf16_f32 v{bo+4*part+k}, v{e+8*part+2*k}, v{e+8*part+2*k+1}')
    a.op(f'buffer_store_dwordx4 {vr(bo,4)}, v{ost}, s[12:15], s8 offen')
    a.op('s_cmp_lg_u32 s2, 0')
    a.op('s_cselect_b32 s10, -1, 0')
    for k in range(4):
        a.op(f'v_and_b32 v{bo+4+k}, s10, v{bo+4+k}')
    a.op(f'buffer_store_dwordx4 {vr(bo+4,4)}, v{ost}, s[12:15], s9 offen')
    a.op('s_endpgm')
    vmax = r.n
    a.label('k2_jobb', reset=True)
    a.op(f's_load_dwordx4 s[8:11], s[0:1], {KA["wg"]}')
    a.op(f's_load_dwordx2 s[12:13], s[0:1], {KA["ws"]}')
    a.op('s_and_b32 s4, s2, 7')
    a.op('s_lshl_b32 s4, s4, 5')
    a.op('s_bfe_u32 s5, s2, 0x50003')
    a.op('s_add_u32 s4, s4, s5')
    r = RA(1)
    lane, n, g = lane_ids(a, r)
    voff, ad, ad2, ad3, ost = r.get(), r.get(), r.get(), r.get(), r.get()
    I2 = 16384
    a.op(f'v_lshlrev_b32 v{ad3}, 4, v{lane}')
    a.op('s_cmp_ge_u32 s4, 224')
    a.op('s_cbranch_scc1 k2_ident')
    a.op('s_cmp_ge_u32 s4, 112')
    a.op('s_cselect_b32 s5, 112, 0')
    a.op('s_cselect_b32 s21, 16, 0')
    a.op('s_sub_u32 s20, s4, s5')
    a.op(f'v_lshrrev_b32 v{voff}, 1, v{lane}')
    a.op(f'v_mul_u32_u24 v{voff}, {16*3584}, v{voff}')
    a.op(f'v_and_b32 v{ad}, 1, v{lane}')
    a.op(f'v_lshl_add_u32 v{voff}, v{ad}, 4, v{voff}')
    a.op('s_mul_i32 s6, s3, 14336')
    a.op('s_lshl_b32 s7, s20, 5')
    a.op('s_add_u32 s6, s6, s7')
    a.op('s_lshl_b32 s7, s3, 12')
    a.op('s_cmp_ge_u32 s4, 112')
    a.op('s_waitcnt lgkmcnt(0)')
    a.op('s_cselect_b32 s8, s10, s8')
    a.op('s_cselect_b32 s9, s11, s9')
    srd(a, 8, 8, 512 * 3584)
    for q in range(4):
        a.op(f's_add_u32 m0, s7, {1024*q}')
        a.op(f's_add_u32 s16, s6, {3584*q}')
        a.op(f'buffer_load_dwordx4 v{voff}, s[8:11], s16 offen lds')
    a.op('s_mov_b32 s22, 0')
    a.op('s_branch k2_bcommon')
    a.label('k2_ident', reset=True)
    a.op('s_sub_u32 s5, s4, 224')
    a.op('s_lshr_b32 s20, s5, 1')
    a.op('s_add_u32 s20, s20, 112')
    a.op('s_and_b32 s21, s5, 1')
    a.op('s_lshl_b32 s21, s21, 4')
    a.op('s_mov_b32 s22, 1')
    a.op('s_lshl_b32 s7, s3, 12')
    a.op('s_waitcnt lgkmcnt(0)')
    a.label('k2_bcommon', reset=True)
    srd(a, 12, 12, WS_END)
    fft = RowFFT(a, r, n, g)
    raw = [r.get(4, 4) for _ in range(4)]
    xf = [r.get(8, 4) for _ in range(4)]
    d1 = [r.get(16, 4) for _ in range(4)]
    b2 = [r.get(8, 4) for _ in range(4)]
    st = r.get(4, 2)
    sdr = r.get(4, 2)
    scv = r.get(4, 2)
    tq = r.get(2)
    a.op(f'v_lshlrev_b32 v{ost}, 9, v{lane}')
    a.op('s_lshl_b32 s6, s20, 15')
    a.op('s_lshl_b32 s16, s3, 2')
    a.op('s_add_u32 s16, s16, s21')
    a.op('s_lshl_b32 s16, s16, 4')
    a.op('s_add_u32 s6, s6, s16')
    a.op(f's_add_u32 s6, s6, {BH:#x}')
    a.op('s_cmp_eq_u32 s22, 1')
    a.op('s_cbranch_scc1 k2_ident2')
    a.op(f'v_lshl_add_u32 v{ad}, v{lane}, 3, s7')
    a.op(f'v_and_b32 v{tq}, 3, v{n}')
    a.op(f'v_bfe_u32 v{tq+1}, v{n}, 2, 1')
    a.op(f'v_lshl_add_u32 v{tq}, v{tq+1}, 3, v{tq}')
    a.op(f'v_lshrrev_b32 v{tq+1}, 3, v{n}')
    a.op(f'v_lshl_add_u32 v{tq}, v{tq+1}, 2, v{tq}')
    a.op(f'v_mul_u32_u24 v{ad2}, 1040, v{tq}')
    a.op(f'v_lshl_add_u32 v{ad2}, v{g}, 8, v{ad2}')
    a.op('s_lshl_b32 s16, s3, 6')
    a.op(f'v_add_u32 v{ad2}, s16, v{ad2}')
    a.op('s_waitcnt vmcnt(0)')
    for q in range(4):
        a.op(f'ds_read_b64_tr_b16 {vr(raw[q],2)}, v{ad} offset:{1024*q}')
        a.op(f'ds_read_b64_tr_b16 {vr(raw[q]+2,2)}, v{ad} offset:{1024*q+512}')
    for q in range(4):
        a.op(f's_waitcnt lgkmcnt({6-2*q+q})')
        a.op(f'ds_write_b128 v{ad2}, {vr(raw[q],4)} offset:{I2+16*q}')
    a.op('s_waitcnt lgkmcnt(0)')
    a.op('s_barrier')
    a.op('s_mul_i32 s16, s3, 4160')
    a.op(f'v_add_u32 v{ad3}, s16, v{ad3}')
    for q in range(4):
        a.op(f'ds_read_b128 {vr(raw[q],4)}, v{ad3} offset:{I2+1040*q}')
    a.op('s_waitcnt lgkmcnt(0)')
    a.op('s_branch k2_bxform')
    a.label('k2_ident2', reset=True)
    a.op('s_lshr_b32 s16, s21, 2')
    a.op('s_add_u32 s16, s16, s3')
    a.op('s_and_b32 s17, s16, 1')
    a.op('s_lshl_b32 s17, s17, 4')
    a.op('s_lshr_b32 s16, s16, 1')
    a.op('s_lshl_b32 s16, s16, 2')
    a.op('s_add_u32 s16, s16, s17')
    a.op('s_sub_u32 s17, s20, 112')
    a.op('s_lshl_b32 s17, s17, 5')
    a.op('s_add_u32 s16, s16, s17')
    a.op(f'v_lshl_add_u32 v{tq}, v{g}, 6, v{n}')
    a.op(f'v_subrev_u32 v{tq}, s16, v{tq}')
    a.op(f'v_mov_b32 v{ad}, 0x3f80')
    a.op(f'v_mov_b32 v{ad2}, 0x3f800000')
    for q in range(4):
        for rr in range(4):
            off = 256 * (rr >> 1) + 32 * (rr & 1)
            a.op(f'v_cmp_eq_u32 vcc, {(q - off) & 0xffffffff:#x}, v{tq}')
            a.op(f'v_cndmask_b32 v{raw[q]+rr}, 0, v{ad}, vcc')
            a.op(f'v_cmp_eq_u32 vcc, {(q - off - 16) & 0xffffffff:#x}, v{tq}')
            a.op(f'v_cndmask_b32 v{raw[q]+rr}, v{raw[q]+rr}, v{ad2}, vcc')
    a.label('k2_bxform', reset=True)
    a.op('s_nop 1')
    for q in range(4):
        a.op(f'v_mov_b32 v{st+q}, 0')
    for i in range(4):
        for q in range(4):
            a.op(f'v_dot2_f32_bf16 v{st+q}, v{raw[q]+i}, v{raw[q]+i}, v{st+q}')
    for q in range(4):
        for i in range(4):
            a.op(f'v_lshlrev_b32 v{xf[q]+2*i}, 16, v{raw[q]+i}')
            a.op(f'v_and_b32 v{xf[q]+2*i+1}, 0xffff0000, v{raw[q]+i}')
    dpp_reduce(a, [st + q for q in range(4)])
    for q in range(4):
        a.op(f'v_readlane_b32 s{24+q}, v{st+q}, 63')
    a.op(f'v_mov_b32 v{tq}, {f2u(1/512)}')
    a.op(f'v_mov_b32 v{tq+1}, {f2u(1e-30)}')
    for q in range(4):
        a.op(f'v_fma_f32 v{sdr+q}, s{24+q}, v{tq}, v{tq+1}')
    for q in range(4):
        a.op(f'v_rsq_f32 v{st+q}, v{sdr+q}')
    for q in range(4):
        a.op(f'v_mul_f32 v{sdr+q}, v{sdr+q}, v{st+q}')
        a.op(f'v_mul_f32 v{st+q}, {f2u(1/16)}, v{st+q}')
    for q in range(4):
        for i in range(8):
            a.op(f'v_mul_f32 v{xf[q]+i}, v{xf[q]+i}, v{st+q}')
        for i in range(4):
            a.op(f'v_cvt_pk_f16_f32 v{raw[q]+i}, v{xf[q]+2*i}, v{xf[q]+2*i+1}')
    fft.run(raw, d1, b2, xf)
    for q in range(4):
        for h in range(2):
            a.op(f'v_pk_mul_f32 {vr(xf[q]+2*h,2)}, {vr(xf[q]+2*h,2)}, {vr(fft.sc+2*h,2)}')
        for i in range(8):
            a.op(f'v_mul_f32 v{xf[q]+i}, v{xf[q]+i}, v{sdr+q}')
        for i in range(4):
            a.op(f'v_cvt_pk_bf16_f32 v{raw[q]+i}, v{xf[q]+2*i}, v{xf[q]+2*i+1}')
        a.op(f'buffer_store_dwordx4 {vr(raw[q],4)}, v{ost}, s[12:15], s6 offen offset:{16*q}')
    a.label('k2_done')
    a.op('s_endpgm')
    return max(vmax, r.n) + 8


def gen_k4(a):
    kernel_begin(a, 'k4_kernel')
    a.op('s_cmp_ge_u32 s2, 256')
    a.op('s_cbranch_scc1 k4_done')
    a.op(f's_load_dwordx2 s[12:13], s[0:1], {KA["ws"]}')
    a.op('s_and_b32 s4, s2, 1')
    a.op('s_lshl_b32 s4, s4, 3')
    a.op('s_bfe_u32 s5, s2, 0x30003')
    a.op('s_add_u32 s4, s4, s5')
    a.op('s_bfe_u32 s5, s2, 0x20001')
    a.op('s_lshl_b32 s5, s5, 2')
    a.op('s_lshr_b32 s6, s2, 6')
    a.op('s_add_u32 s5, s5, s6')
    ACC = 0
    BHR = 64
    BF = 192
    lane, vsrc, vl16, t0, t1 = 224, 225, 226, 227, 228
    adr = 230
    ssq = 234
    rs = 236
    a.op(f'v_lshrrev_b32 v{t0}, 6, v0')
    a.op(f'v_and_b32 v{lane}, 63, v0')
    a.op(f'v_readfirstlane_b32 s3, v{t0}')
    a.op(f'v_bfe_u32 v{t0}, v{lane}, 2, 2')
    a.op(f'v_mul_u32_u24 v{vsrc}, {HS}, v{t0}')
    a.op(f'v_lshrrev_b32 v{t1}, 4, v{lane}')
    a.op(f'v_lshl_add_u32 v{vsrc}, v{t1}, 6, v{vsrc}')
    a.op(f'v_and_b32 v{t1}, 3, v{lane}')
    a.op(f'v_lshl_add_u32 v{vsrc}, v{t1}, 4, v{vsrc}')
    a.op(f'v_lshlrev_b32 v{vl16}, 4, v{lane}')
    a.op('s_lshl_b32 s16, s4, 8')
    a.op(f's_mul_i32 s17, s3, {4*HS}')
    a.op('s_add_u32 s16, s16, s17')
    a.op(f's_add_u32 s16, s16, {HT:#x}')
    a.op('s_lshl_b32 s17, s3, 10')
    a.op('s_lshl_b32 s18, s5, 3')
    a.op('s_add_u32 s18, s18, s3')
    a.op('s_lshl_b32 s18, s18, 15')
    a.op(f's_add_u32 s18, s18, {BH:#x}')
    a.op('s_waitcnt lgkmcnt(0)')
    srd(a, 12, 12, WS_END)
    for i in range(16):
        a.op('s_mov_b32 m0, s17')
        if i < 15:
            a.op('s_add_u32 s17, s17, 8192')
        else:
            a.op('s_nop 0')
        a.op(f'buffer_load_dwordx4 v{vsrc}, s[12:15], s16 offen lds')
        if i < 15:
            a.op(f's_add_u32 s16, s16, {32*HS}')
        for k in range(2):
            t = 2 * i + k
            a.op(f'buffer_load_dwordx4 {vr(BHR+4*t,4)}, v{vl16}, s[12:15], s18 offen offset:{1024*(t&3)}')
        if i & 1:
            a.op('s_add_u32 s18, s18, 4096')
    a.op(f'v_lshrrev_b32 v{t0}, 5, v{lane}')
    a.op(f'v_lshlrev_b32 v{t0}, 11, v{t0}')
    a.op(f'v_bfe_u32 v{t1}, v{lane}, 2, 2')
    a.op(f'v_lshl_add_u32 v{t0}, v{t1}, 6, v{t0}')
    a.op(f'v_bfe_u32 v{t1}, v{lane}, 4, 1')
    a.op(f'v_lshl_add_u32 v{t0}, v{t1}, 5, v{t0}')
    a.op(f'v_and_b32 v{t1}, 3, v{lane}')
    a.op(f'v_lshl_add_u32 v{t0}, v{t1}, 3, v{t0}')
    for s in range(4):
        a.op(f's_add_u32 s{20+s}, s3, {s}')
        a.op(f's_and_b32 s{20+s}, s{20+s}, 3')
        a.op(f's_lshl_b32 s19, s{20+s}, 8')
        a.op(f'v_add_u32 v{adr+s}, s19, v{t0}')
    a.op(f'v_mov_b32 v{ssq}, 0')
    a.op(f'v_mov_b32 v{ssq+1}, 0')

    def rd(t, s):
        buf = BF + 16 * (t & 1) + 4 * s
        off = (t & 15) * 4096
        a.op(f'ds_read_b64_tr_b16 {vr(buf,2)}, v{adr+s} offset:{off}')
        a.op(f'ds_read_b64_tr_b16 {vr(buf+2,2)}, v{adr+s} offset:{off+1024}')

    GR = 2
    def sync(i):
        left = 3 * (16 - (i + GR))
        a.op(f's_waitcnt vmcnt({left})')
        a.op('s_barrier')

    sync(0)
    for s in range(4):
        rd(0, s)
    for t in range(32):
        nt_ = t + 1
        if nt_ < 32 and nt_ % (2 * GR) == 0:
            sync(nt_ // 2)
        if nt_ == 16:
            for s in range(4):
                a.op(f'v_add_u32 v{adr+s}, 0x10000, v{adr+s}')
        for s in range(4):
            if nt_ < 32:
                rd(nt_, s)
                a.op('s_waitcnt lgkmcnt(8)')
            else:
                a.op(f's_waitcnt lgkmcnt({6-2*s})')
            buf = BF + 16 * (t & 1) + 4 * s
            c = '0' if t == 0 else vr(ACC + 16 * s, 16)
            a.op(f'v_mfma_f32_32x32x16_bf16 {vr(ACC+16*s,16)}, {vr(BHR+4*t,4)}, {vr(buf,4)}, {c}')
            if s == 0:
                for k in range(4):
                    a.op(f'v_dot2_f32_bf16 v{ssq+(k&1)}, v{buf+k}, v{buf+k}, v{ssq+(k&1)}')
    a.op('s_cmp_ge_u32 s5, 14')
    a.op('s_cbranch_scc1 k4_hres')
    a.op(f'v_add_f32 v{ssq}, v{ssq}, v{ssq+1}')
    a.op(f'v_mov_b32 v{ssq+1}, v{ssq}')
    a.op(f'v_permlane32_swap_b32 v{ssq}, v{ssq+1}')
    a.op(f'v_add_f32 v{ssq}, v{ssq}, v{ssq+1}')
    a.op(f'v_mov_b32 v{t1}, {f2u(1e-5)}')
    a.op(f'v_fmamk_f32 v{ssq}, v{ssq}, {f2u(1/512)}, v{t1}')
    a.op(f'v_and_b32 v{t0}, 31, v{lane}')
    a.op(f'v_lshlrev_b32 v{t0}, 2, v{t0}')
    a.op(f'v_add_u32 v{t0}, 0x20000, v{t0}')
    a.op('s_lshl_b32 s19, s20, 7')
    a.op(f'v_add_u32 v{t1}, s19, v{t0}')
    a.op(f'ds_write_b32 v{t1}, v{ssq}')
    a.op('s_waitcnt lgkmcnt(0)')
    a.op('s_barrier')
    for s in range(4):
        a.op(f's_lshl_b32 s19, s{20+s}, 7')
        a.op(f'v_add_u32 v{t1}, s19, v{t0}')
        a.op(f'ds_read_b32 v{rs+s}, v{t1}')
    a.op('s_lshl_b32 s16, s5, 3')
    a.op('s_add_u32 s16, s16, s3')
    a.op('s_mul_i32 s17, s4, 448')
    a.op('s_add_u32 s16, s16, s17')
    a.op('s_lshl_b32 s16, s16, 10')
    a.op(f's_add_u32 s16, s16, {HG:#x}')
    a.op('s_waitcnt lgkmcnt(0)')
    for s in range(4):
        a.op(f'v_rsq_f32 v{rs+4+s}, v{rs+s}')
    for s in range(4):
        a.op(f'v_mul_f32 v{rs+s}, v{rs+s}, v{rs+4+s}')
        a.op(f'v_mul_f32 v{rs+4+s}, {f2u(-math.log2(math.e))}, v{rs+4+s}')
    for s in range(4):
        G, U = ACC + 16 * s, ACC + 16 * s + 8
        for k in range(8):
            a.op(f'v_mul_f32 v{G+k}, v{G+k}, v{rs+4+s}')
        for k in range(8):
            a.op(f'v_exp_f32 v{G+k}, v{G+k}')
        for k in range(8):
            a.op(f'v_fma_f32 v{G+k}, v{G+k}, v{rs+s}, v{rs+s}')
        for k in range(8):
            a.op(f'v_rcp_f32 v{G+k}, v{G+k}')
        for k in range(8):
            a.op(f'v_mul_f32 v{U+k}, v{U+k}, v{G+k}')
        o = BF + 4 * s
        for k in range(4):
            a.op(f'v_cvt_pk_bf16_f32 v{o+k}, v{U+2*k}, v{U+2*k+1}')
        a.op(f's_mul_i32 s19, s{20+s}, {112*1024}')
        a.op('s_add_u32 s19, s19, s16')
        a.op(f'buffer_store_dwordx4 {vr(o,4)}, v{vl16}, s[12:15], s19 offen')
    a.op('s_endpgm')
    a.label('k4_hres', reset=True)
    a.op('s_nop 7')
    a.op('s_nop 3')
    a.op(f'v_and_b32 v{t0}, 31, v{lane}')
    a.op(f'v_lshlrev_b32 v{t1}, 2, v{t0}')
    for s in range(4):
        a.op('s_lshl_b32 s16, s4, 2')
        a.op(f's_add_u32 s16, s16, s{20+s}')
        a.op(f's_lshl_b32 s{24+s}, s16, 15')
        a.op('s_lshl_b32 s16, s16, 7')
        a.op(f's_add_u32 s16, s16, {STAT:#x}')
        a.op(f'buffer_load_dword v{rs+s}, v{t1}, s[12:15], s16 offen')
    a.op(f'v_lshlrev_b32 v{t0}, 10, v{t0}')
    a.op(f'v_lshrrev_b32 v{t1}, 5, v{lane}')
    a.op(f'v_lshl_add_u32 v{t0}, v{t1}, 5, v{t0}')
    a.op('s_sub_u32 s16, s5, 14')
    a.op('s_lshl_b32 s16, s16, 9')
    a.op('s_lshl_b32 s17, s3, 6')
    a.op('s_add_u32 s16, s16, s17')
    a.op(f's_add_u32 s16, s16, {HRES:#x}')
    for s in range(4):
        a.op(f's_waitcnt vmcnt({3-s+2*s})')
        for k in range(16):
            a.op(f'v_add_f32 v{ACC+16*s+k}, v{ACC+16*s+k}, v{rs+s}')
        o = BHR + 8 * s
        for k in range(8):
            a.op(f'v_cvt_pk_bf16_f32 v{o+k}, v{ACC+16*s+2*k}, v{ACC+16*s+2*k+1}')
        a.op(f's_add_u32 s19, s16, s{24+s}')
        a.op(f'buffer_store_dwordx4 {vr(o,4)}, v{t0}, s[12:15], s19 offen')
        a.op(f'buffer_store_dwordx4 {vr(o+4,4)}, v{t0}, s[12:15], s19 offen offset:16')
    a.label('k4_done')
    a.op('s_endpgm')
    return 256


def gen_k5(a):
    kernel_begin(a, 'k5_kernel')
    a.op('s_cmp_ge_u32 s2, 256')
    a.op('s_cbranch_scc1 k5_done')
    a.op(f's_load_dwordx2 s[12:13], s[0:1], {KA["ws"]}')
    a.op(f's_load_dwordx2 s[8:9], s[0:1], {KA["out"]}')
    a.op('s_bfe_u32 s4, s2, 0x20001')
    a.op('s_lshl_b32 s4, s4, 3')
    a.op('s_bfe_u32 s5, s2, 0x30003')
    a.op('s_add_u32 s4, s4, s5')
    a.op('s_and_b32 s5, s2, 1')
    a.op('s_lshl_b32 s5, s5, 2')
    a.op('s_lshr_b32 s6, s2, 6')
    a.op('s_add_u32 s5, s5, s6')
    ACC = 0
    lane, vl16, t0, t1, hres = 64, 65, 66, 67, 68
    FR = 80
    NK = 28
    NRING = 11 + 16

    def frag(t, x):
        sl = t % NRING
        if sl < 11:
            return vr(FR + 16 * sl + 4 * x, 4)
        return ar(16 * (sl - 11) + 4 * x, 4)

    a.op(f'v_lshrrev_b32 v{t0}, 6, v0')
    a.op(f'v_and_b32 v{lane}, 63, v0')
    a.op(f'v_readfirstlane_b32 s3, v{t0}')
    a.op(f'v_lshlrev_b32 v{vl16}, 4, v{lane}')
    a.op('s_and_b32 s6, s3, 1')
    a.op('s_lshr_b32 s7, s3, 1')
    a.op('s_mul_i32 s16, s3, 28')
    for am in range(2):
        a.op(f's_xor_b32 s17, s6, {am}')
        a.op('s_lshl_b32 s18, s5, 1')
        a.op('s_add_u32 s17, s17, s18')
        a.op('s_mul_i32 s17, s17, 112')
        a.op('s_add_u32 s17, s17, s16')
        a.op('s_lshl_b32 s17, s17, 10')
        a.op(f's_add_u32 s{20+am}, s17, {WDF:#x}')
    for bn in range(2):
        a.op(f's_xor_b32 s17, s7, {bn}')
        a.op('s_lshl_b32 s18, s4, 1')
        a.op('s_add_u32 s17, s17, s18')
        a.op('s_mul_i32 s17, s17, 112')
        a.op('s_add_u32 s17, s17, s16')
        a.op('s_lshl_b32 s17, s17, 10')
        a.op(f's_add_u32 s{22+bn}, s17, {HG:#x}')
    a.op('s_waitcnt lgkmcnt(0)')
    srd(a, 12, 12, WS_END)

    def load(t):
        for x in range(4):
            a.op(f'buffer_load_dwordx4 {frag(t,x)}, v{vl16}, s[12:15], s{20+x} offen offset:{1024*(t&3)}')
        if t & 3 == 3:
            for x in range(4):
                a.op(f's_add_u32 s{20+x}, s{20+x}, 4096')

    PRE = 15
    for t in range(PRE):
        load(t)
    srd(a, 8, 8, 2048 * 1024)
    a.op(f'v_and_b32 v{t0}, 31, v{lane}')
    a.op(f'v_lshlrev_b32 v{t0}, 10, v{t0}')
    a.op(f'v_lshrrev_b32 v{t1}, 5, v{lane}')
    a.op(f'v_lshl_add_u32 v{t0}, v{t1}, 5, v{t0}')
    a.op('s_lshl_b32 s24, s4, 1')
    a.op('s_add_u32 s24, s24, s7')
    a.op('s_lshl_b32 s24, s24, 15')
    a.op('s_lshl_b32 s25, s5, 1')
    a.op('s_add_u32 s25, s25, s6')
    a.op('s_lshl_b32 s25, s25, 6')
    a.op('s_add_u32 s24, s24, s25')
    a.op(f's_add_u32 s25, s24, {HRES:#x}')
    issued = PRE
    for t in range(NK):
        hl = 0
        extra = 2 if issued == NK and t > 0 and hres_issued else 0
        if t == 0:
            hres_issued = False
        a.op(f's_waitcnt vmcnt({(issued-t-1)*4 + (2 if hres_issued else 0)})')
        for am in range(2):
            for bn in range(2):
                acc = vr(ACC + (2 * am + bn) * 16, 16)
                c = '0' if t == 0 else acc
                a.op(f'v_mfma_f32_32x32x16_bf16 {acc}, {frag(t,am)}, {frag(t,2+bn)}, {c}')
        if issued < NK:
            load(issued)
            issued += 1
        elif not hres_issued:
            a.op(f'buffer_load_dwordx4 {vr(hres,4)}, v{t0}, s[12:15], s25 offen')
            a.op(f'buffer_load_dwordx4 {vr(hres+4,4)}, v{t0}, s[12:15], s25 offen offset:16')
            hres_issued = True
    for sl in range(1, 4):
        am, bn = sl >> 1, sl & 1
        code = am | (bn << 1)
        a.op(f's_xor_b32 s16, s3, {code}')
        a.op('s_mul_i32 s16, s16, 12288')
        a.op(f'v_add_u32 v{t1}, s16, v{vl16}')
        for k in range(4):
            a.op(f'ds_write_b128 v{t1}, {vr(ACC+16*sl+4*k,4)} offset:{(sl-1)*4096+k*1024}')
    a.op('s_mul_i32 s16, s3, 12288')
    a.op(f'v_add_u32 v{t1}, s16, v{vl16}')
    a.op('s_waitcnt lgkmcnt(0)')
    a.op('s_barrier')
    for sl in range(1, 4):
        for k in range(4):
            a.op(f'ds_read_b128 {vr(ACC+16*sl+4*k,4)}, v{t1} offset:{(sl-1)*4096+k*1024}')
    a.op('s_waitcnt vmcnt(0)')
    hf = FR
    for k in range(8):
        a.op(f'v_lshlrev_b32 v{hf+2*k}, 16, v{hres+k}')
        a.op(f'v_and_b32 v{hf+2*k+1}, 0xffff0000, v{hres+k}')
    for sl in range(1, 4):
        a.op(f's_waitcnt lgkmcnt({12-4*sl})')
        for k in range(8):
            a.op(f'v_pk_add_f32 {vr(ACC+2*k,2)}, {vr(ACC+2*k,2)}, {vr(ACC+16*sl+2*k,2)}')
    for k in range(8):
        a.op(f'v_pk_add_f32 {vr(ACC+2*k,2)}, {vr(ACC+2*k,2)}, {vr(hf+2*k,2)}')
    for k in range(8):
        a.op(f'v_cvt_pk_bf16_f32 v{hres+k}, v{ACC+2*k}, v{ACC+2*k+1}')
    a.op(f'buffer_store_dwordx4 {vr(hres,4)}, v{t0}, s[8:11], s24 offen')
    a.op(f'buffer_store_dwordx4 {vr(hres+4,4)}, v{t0}, s[8:11], s24 offen offset:16')
    a.label('k5_done')
    a.op('s_endpgm')
    return 512


def main():
    a = Asm()
    v1 = gen_k1(a)
    v2 = gen_k2(a)
    v4 = gen_k4(a)
    v5 = gen_k5(a)
    hdr = open('cdna_kernels/' + NAME + '.s.ref').read().split('; Override launch')[0]
    hdr += '; @launch kernel=k1_kernel grid=(624,1,1) block=(256,1,1) lds=16384\n'
    hdr += '; @launch kernel=k2_kernel grid=(512,1,1) block=(256,1,1) lds=33280\n'
    hdr += '; @launch kernel=k4_kernel grid=(256,1,1) block=(512,1,1) lds=131584\n'
    hdr += '; @launch kernel=k5_kernel grid=(256,1,1) block=(256,1,1) lds=49152\n'
    txt = hdr + '.amdgcn_target "amdgcn-amd-amdhsa--gfx950"\n.text\n' + a.text()
    txt += '.section .rodata,"a"\n'
    txt += kd('k1_kernel', v1) + kd('k2_kernel', v2) + kd('k4_kernel', v4) + kd('k5_kernel', 512, 256)
    out = sys.argv[1] if len(sys.argv) > 1 else 'cdna_kernels/' + NAME + '.s'
    open(out, 'w').write(txt)
    print('vgprs', v1, v2, v4, v5, 'nops inserted', a.nops, 'bytes', len(txt))


if __name__ == '__main__':
    main()
```

```python
import re

_REG = re.compile(r'^(-|abs\(|\|)?([vas])(\d+|\[(\d+):(\d+)\])')


def regs_of(tok):
    tok = tok.strip()
    if tok in ('vcc',):
        return [('s', 106), ('s', 107)]
    if tok == 'vcc_lo':
        return [('s', 106)]
    if tok == 'vcc_hi':
        return [('s', 107)]
    if tok == 'exec':
        return [('s', 126), ('s', 127)]
    if tok == 'm0':
        return [('s', 124)]
    t = tok
    while t[:1] in '-|' and len(t) > 1 and not t[1:2].isdigit():
        t = t[1:]
    if t.startswith('abs('):
        t = t[4:]
    m = re.match(r'^([vas])(\d+)(?![\w\[])', t)
    if m:
        return [(m.group(1), int(m.group(2)))]
    m = re.match(r'^([vas])\[(\d+):(\d+)\]', t)
    if m:
        return [(m.group(1), i) for i in range(int(m.group(2)), int(m.group(3)) + 1)]
    return []


TRANS = ('v_exp_f32', 'v_log_f32', 'v_rcp_f32', 'v_rsq_f32', 'v_sqrt_f32', 'v_sin_f32', 'v_cos_f32',
         'v_rcp_iflag_f32', 'v_exp_f16', 'v_rcp_f16')


def mfma_passes(mn):
    if '32x32x16' in mn or '32x32x8' in mn:
        return 8
    if '16x16x32' in mn or '16x16x16' in mn:
        return 4
    if '4x4x4' in mn:
        return 2
    if '32x32x2_f32' in mn:
        return 16
    if '16x16x4_f32' in mn:
        return 8
    raise ValueError(mn)


class Ins:
    __slots__ = ('text', 'mn', 'kind', 'rd', 'wr', 'ws', 'srcc', 'ab', 'passes', 'dpp', 'opsel', 'wide_store',
                 'store_data', 'ldsdma', 'addr_s', 'lanesel', 'const_s')


def split_ops(s):
    out, depth, cur = [], 0, ''
    for ch in s:
        if ch in '[(':
            depth += 1
        if ch in '])':
            depth -= 1
        if ch == ',' and depth == 0:
            out.append(cur.strip())
            cur = ''
        else:
            cur += ch
    if cur.strip():
        out.append(cur.strip())
    return out


def parse(text):
    I = Ins()
    I.text = text
    t = text.split(';')[0].strip()
    parts = t.split(None, 1)
    mn = parts[0]
    rest = parts[1] if len(parts) > 1 else ''
    ops = split_ops(rest)
    mods = ''
    if ops:
        lp = ops[-1].split(None, 1)
        if len(lp) > 1 and not ops[-1].startswith(('vmcnt', 'lgkmcnt', 'expcnt')):
            ops[-1] = lp[0]
            mods = lp[1]
    base = re.sub(r'_(e32|e64|dpp|sdwa)$', '', mn)
    I.mn = base
    I.rd, I.wr = [], []
    I.ws = 1
    I.srcc, I.ab, I.passes = [], [], 0
    I.dpp = ('dpp' in mn) or any(k in mods for k in ('row_', 'quad_perm', 'wave_'))
    I.opsel = ('sdwa' in mn and 'dst_sel:DWORD' not in mods) or base.startswith('v_fma_mixlo') or base.startswith('v_fma_mixhi')
    I.wide_store = False
    I.store_data = []
    I.ldsdma = False
    I.addr_s = []
    I.lanesel = []
    I.const_s = []
    R = [regs_of(o) for o in ops]
    if base.startswith('v_mfma'):
        I.kind = 'mfma'
        I.wr = R[0]
        I.ab = R[1] + R[2]
        I.srcc = R[3]
        I.rd = I.ab + I.srcc
        I.passes = mfma_passes(base)
    elif base.startswith('v_'):
        I.kind = 'trans' if base in TRANS else 'valu'
        if base.startswith('v_cmp'):
            I.wr = R[0] + (regs_of('exec') if base.startswith('v_cmpx') else [])
            I.rd = sum(R[1:], [])
        elif base in ('v_add_co_u32', 'v_sub_co_u32', 'v_subrev_co_u32', 'v_addc_co_u32', 'v_subb_co_u32',
                      'v_mad_u64_u32', 'v_div_scale_f32'):
            I.wr = R[0] + R[1]
            I.rd = sum(R[2:], [])
        elif base.startswith('v_permlane') and 'swap' in base:
            I.wr = R[0] + R[1]
            I.rd = R[0] + R[1]
        elif base in ('v_nop',):
            pass
        else:
            I.wr = R[0]
            I.rd = sum(R[1:], [])
            if base in ('v_fmac_f32', 'v_dot2c_f32_bf16', 'v_dot2c_f32_f16', 'v_pk_fmac_f16', 'v_writelane_b32',
                        'v_fma_mixlo_f16', 'v_fma_mixhi_f16') or I.dpp:
                I.rd = I.rd + R[0]
            if base == 'v_cndmask_b32' and len(ops) == 3:
                I.rd = I.rd + regs_of('vcc')
            if base in ('v_readlane_b32', 'v_writelane_b32'):
                I.lanesel = [r for r in R[2] if r[0] == 's']
        I.const_s = [r for r in I.rd if r[0] == 's']
    elif base.startswith('ds_'):
        I.kind = 'ds'
        if base.startswith('ds_read') or base.startswith('ds_bpermute') or base.startswith('ds_permute') or base.startswith('ds_swizzle'):
            I.wr = R[0]
            I.rd = sum(R[1:], [])
        else:
            I.rd = sum(R, [])
    elif base.startswith('buffer_') or base.startswith('global_'):
        I.kind = 'vmem'
        lds = (' lds' in (' ' + mods)) or base.startswith('global_load_lds')
        if base in ('buffer_wbl2', 'buffer_inv'):
            pass
        elif lds:
            I.ldsdma = True
            I.rd = sum(R, []) + regs_of('m0')
        elif 'load' in base:
            I.wr = R[0]
            I.rd = sum(R[1:], [])
        elif 'atomic' in base:
            I.rd = sum(R, [])
            if 'sc0' in mods:
                I.wr = R[0]
        else:
            I.rd = sum(R, [])
            data = R[0] if base.startswith('buffer_') else R[1]
            if 'x4' in base or 'x3' in base:
                I.wide_store = True
                I.store_data = data
        I.addr_s = [r for r in I.rd if r[0] == 's']
    elif base.startswith('s_load') or base.startswith('s_buffer_load') or base in ('s_memtime', 's_memrealtime'):
        I.kind = 'smem'
        I.wr = R[0]
        I.rd = sum(R[1:], [])
    elif base == 's_nop':
        I.kind = 'nop'
        I.ws = int(ops[0], 0) + 1
    elif base.startswith('s_'):
        I.kind = 'salu'
        if base.startswith(('s_cmp', 's_waitcnt', 's_barrier', 's_branch', 's_cbranch', 's_setprio', 's_endpgm',
                            's_sleep', 's_bitcmp')):
            I.rd = sum(R, [])
        else:
            I.wr = R[0]
            I.rd = sum(R[1:], [])
            if 'saveexec' in base:
                I.wr = I.wr + regs_of('exec')
    else:
        raise ValueError('unknown instruction: ' + text)
    return I


def ov(a, b):
    return bool(set(a) & set(b))


def need(p, c):
    n = 0
    pv = p.kind in ('valu', 'trans')
    cv = c.kind in ('valu', 'trans')
    pw_v = [r for r in p.wr if r[0] != 's']
    pw_s = [r for r in p.wr if r[0] == 's']
    if pv:
        if c.kind == 'mfma' and ov(pw_v, c.rd):
            n = max(n, 2)
        if c.kind == 'mfma' and ov(pw_s, regs_of('exec')):
            n = max(n, 4)
        if cv and c.dpp and ov(pw_v, c.rd):
            n = max(n, 2)
        if cv and c.dpp and ov(pw_s, regs_of('exec')):
            n = max(n, 5)
        if cv and c.mn.startswith('v_permlane') and ov(pw_v, c.rd):
            n = max(n, 2)
        if cv and c.mn.startswith('v_permlane') and ov(pw_s, regs_of('exec')):
            n = max(n, 4)
        if cv and c.mn in ('v_readlane_b32', 'v_readfirstlane_b32') and ov(pw_v, c.rd):
            n = max(n, 1)
        if cv and c.mn in ('v_readlane_b32', 'v_readfirstlane_b32', 'v_writelane_b32') and ov(pw_s, regs_of('exec')):
            n = max(n, 4)
        if cv and ov(pw_s, c.const_s):
            n = max(n, 2)
        if cv and ov(pw_s, c.lanesel):
            n = max(n, 4)
        if c.kind == 'vmem' and ov(pw_s, c.addr_s):
            n = max(n, 5)
        if c.kind in ('salu', 'smem') and ov(pw_s, c.rd):
            n = max(n, 1)
        if p.kind == 'trans' and c.kind in ('valu', 'mfma', 'vmem', 'ds') and ov(pw_v, c.rd):
            n = max(n, 1)
        if p.opsel and cv and (ov(pw_v, c.rd) or ov(pw_v, c.wr)):
            n = max(n, 1)
        if p.mn.startswith('v_dot'):
            if ov(pw_v, c.rd) or ov(pw_v, c.wr):
                same_c = (c.mn == p.mn) and not ov(pw_v, [r for r in c.rd if r not in c.wr])
                if not same_c:
                    n = max(n, 3)
    if p.kind == 'salu' and ov(p.wr, regs_of('m0')) and c.ldsdma:
        n = max(n, 1)
    if p.kind == 'vmem' and p.wide_store and ov(p.store_data, c.wr):
        n = max(n, 2 if cv or c.kind == 'mfma' else 1)
    if p.kind == 'mfma':
        big = {2: 5, 4: 8, 8: 12, 16: 20}[p.passes]
        if c.kind == 'mfma':
            if ov(p.wr, c.ab):
                n = max(n, big)
            if ov(p.wr, c.srcc):
                if p.wr == c.srcc and p.passes == c.passes:
                    n = max(n, 2 if p.passes == 2 else 0)
                else:
                    n = max(n, {2: 4, 4: 6, 8: 10, 16: 18}[p.passes])
            elif ov(p.wr, c.wr):
                n = max(n, big)
        else:
            if ov(p.wr, c.rd) or ov(p.wr, c.wr):
                n = max(n, big)
            if cv and ov(p.srcc, c.wr):
                n = max(n, {2: 1, 4: 3, 8: 7, 16: 15}[p.passes])
    return n


class Asm:
    def __init__(self):
        self.out = []
        self.hist = []
        self.vm = []
        self.lg = []
        self.nops = 0
        self.check_waits = True
        self.vmseq = 0
        self.lgseq = 0
        self.sprinkle = None
        self._spr_cnt = 0
        self._in_spr = False

    def raw(self, s):
        self.out.append(s)

    def comment(self, s):
        self.out.append('    ; ' + s)

    def label(self, name, reset=False):
        self.out.append(name + ':')
        if reset:
            self.reset()

    def reset(self):
        self.hist = []
        self.vm = []
        self.lg = []

    def _waitcheck(self, I):
        if I.mn == 's_waitcnt':
            m = re.search(r'vmcnt\((\d+)\)', I.text)
            if m:
                n = int(m.group(1))
                while len(self.vm) > n:
                    self.vm.pop(0)
            m = re.search(r'lgkmcnt\((\d+)\)', I.text)
            if m:
                n = int(m.group(1))
                if n == 0:
                    self.lg = []
                elif not any(x[0] for x in self.lg):
                    while len(self.lg) > n:
                        self.lg.pop(0)
            return
        touched = set(I.rd) | set(I.wr)
        if self.check_waits:
            for d in self.vm:
                if touched & set(d):
                    raise RuntimeError('vmcnt hazard: ' + I.text)
            for sm, d in self.lg:
                if touched & set(d):
                    raise RuntimeError('lgkmcnt hazard: ' + I.text)
        if I.kind == 'vmem' and I.mn not in ('buffer_wbl2', 'buffer_inv'):
            self.vm.append(list(I.wr))
            self.vmseq += 1
            if len(self.vm) > 63:
                raise RuntimeError('more than 63 vmem ops outstanding: ' + I.text)
        elif I.kind == 'ds':
            self.lg.append((False, list(I.wr)))
            self.lgseq += 1
        elif I.kind == 'smem':
            if I.mn not in ('s_memtime', 's_memrealtime'):
                self.lg.append((True, list(I.wr)))

    def op(self, text):
        for line in text.strip().split('\n'):
            line = line.strip()
            if not line or line.startswith(';'):
                continue
            self._op1(line)
            if self.sprinkle and not self._in_spr and self.sprinkle[1]:
                self._spr_cnt += 1
                if self._spr_cnt >= self.sprinkle[0] and not line.startswith(('s_cmp', 's_mov_b32 m0', 's_add_u32 m0', 'v_cmp', 's_bitcmp')) and len(self.vm) < 61:
                    self._spr_cnt = 0
                    self._in_spr = True
                    self.sprinkle[1].pop(0)()
                    self._in_spr = False

    def _op1(self, text):
        I = parse(text)
        dist = 0
        pad = 0
        for p in reversed(self.hist):
            n = need(p, I)
            if n - dist > pad:
                pad = n - dist
            dist += p.ws
            if dist >= 21:
                break
        while pad > 0:
            k = min(pad, 16)
            N = parse('s_nop %d' % (k - 1))
            self.hist.append(N)
            self.out.append('    s_nop %d' % (k - 1))
            self.nops += k
            pad -= k
        self._waitcheck(I)
        self.hist.append(I)
        if len(self.hist) > 40:
            self.hist = self.hist[-30:]
        self.out.append('    ' + text)
        if I.mn in ('s_branch', 's_endpgm'):
            self.reset()

    def vm_tok(self):
        return self.vmseq

    def wait_vm_tok(self, tok, force=False):
        n = self.vmseq - tok
        if n < len(self.vm) or force:
            self.op('s_waitcnt vmcnt(%d)' % min(n, 63))

    def wait_vm(self, regtext):
        regs = set(regs_of(regtext))
        last = None
        for i, d in enumerate(self.vm):
            if regs & set(d):
                last = i
        if last is not None:
            self.op('s_waitcnt vmcnt(%d)' % (len(self.vm) - 1 - last))

    def lg_tok(self):
        return self.lgseq

    def wait_lg_tok(self, tok):
        n = self.lgseq - tok
        assert not any(x[0] for x in self.lg)
        if n < len(self.lg):
            self.op('s_waitcnt lgkmcnt(%d)' % min(n, 15))
            return True
        return False

    def wait_lg(self, regtext):
        regs = set(regs_of(regtext))
        last = None
        for i, (sm, d) in enumerate(self.lg):
            if regs & set(d):
                last = i
        if last is not None:
            assert not any(x[0] for x in self.lg)
            self.op('s_waitcnt lgkmcnt(%d)' % min(15, len(self.lg) - 1 - last))
            return True
        return False

    def text(self):
        return '\n'.join(self.out) + '\n'


def vr(a, n):
    return 'v%d' % a if n == 1 else 'v[%d:%d]' % (a, a + n - 1)


def ar(a, n):
    return 'a%d' % a if n == 1 else 'a[%d:%d]' % (a, a + n - 1)


def sr(a, n):
    return 's%d' % a if n == 1 else 's[%d:%d]' % (a, a + n - 1)


def f2u(x):
    import struct
    return '0x%08x' % struct.unpack('<I', struct.pack('<f', x))[0]
```

```python
import sys
import os
import math
from contextlib import contextmanager
from asmlib import Asm, vr, ar, sr, f2u

NAME = 'sequential_preLN__spectral_gfnet__glu_gated_glu__prompt'
E = lambda k, d: int(os.environ.get(k, d))

CS = 16384 + 256
HS = 4096 + 256
ZW = 0x000000
HT = 0x420000
HRES = 0x640000
BH = 0x840000
STAT = 0xC40000
SSQ = 0xC48000
SY1 = 0xC70000
SYZ = 0xC80000
SY2, FB, SY3 = SYZ, SYZ + 0x10000, SYZ + 0x20000
HG = 0xCC0000
WS_END = HG + 64 * 112 * 1024
assert ZW + 256 * CS <= HT and HT + 512 * HS <= HRES
PROF = 0x1800000
DO_PROF = bool(E('PROF', '0'))
if DO_PROF:
    WS_END = PROF + 4 * 1024 * 8 * 64
SPIN_MAX = 1 << 15
STAMPS = os.environ.get('STAMPS', 'start,karg,xdata,astore,sig1,bstore,seen1,zdata,hstore,sig2,seen2,loop0,loop1,epi').split(',')

XR = 0
WPL = 8192 + 64
STL = 16448
WRAW = 16640
IM1 = 25600
IM2 = 43008
WST = 59648
SQX = 0x20000
RX = 0x22000
LDS_BYTES = WST + 4 * 20480
assert LDS_BYTES <= 163840 and RX + 512 <= LDS_BYTES


def stamp(a, name):
    if DO_PROF and name in STAMPS:
        i = STAMPS.index(name)
        with nospr(a):
            a.op(f's_memtime s[{60+2*i}:{61+2*i}]')
            if i == 0:
                a.op('s_memrealtime s[90:91]')


def prof_flush(a, vt=250):
    if not DO_PROF:
        return
    nst = len(STAMPS)
    assert nst <= 14
    a.op('s_waitcnt vmcnt(0)')
    a.op('s_memrealtime s[92:93]')
    a.op('s_lshl_b32 s94, s2, 3')
    a.op('s_add_u32 s94, s94, s3')
    a.op('s_lshl_b32 s94, s94, 6')
    a.op(f's_add_u32 s94, s94, {PROF:#x}')
    a.op('s_mov_b64 exec, 1')
    a.op(f'v_mov_b32 v{vt}, 0')
    a.op('s_waitcnt lgkmcnt(0)')
    for i in range(nst):
        a.op(f's_sub_u32 s95, s{60+2*i}, s60')
        a.op(f'v_mov_b32 v{vt+1}, s95')
        a.op(f'buffer_store_dword v{vt+1}, v{vt}, s[12:15], s94 offen offset:{4*i}')
    for i, sreg in enumerate((90, 92)):
        a.op(f'v_mov_b32 v{vt+1}, s{sreg}')
        a.op(f'buffer_store_dword v{vt+1}, v{vt}, s[12:15], s94 offen offset:{56+4*i}')


@contextmanager
def nospr(a):
    old = a._in_spr
    a._in_spr = True
    yield
    a._in_spr = old


def srd(a, s, ptr, nbytes):
    if s != ptr:
        a.op(f's_mov_b32 s{s}, s{ptr}')
    a.op(f's_and_b32 s{s+1}, s{ptr+1}, 0xffff')
    a.op(f's_mov_b32 s{s+2}, {nbytes:#x}')
    a.op(f's_mov_b32 s{s+3}, 0x20000')


def kd(name, vgpr, accum=None, sgpr=100):
    accum = accum if accum is not None else (vgpr + 3) // 4 * 4
    return f""".p2align 6
.amdhsa_kernel {name}
  .amdhsa_next_free_vgpr {vgpr}
  .amdhsa_next_free_sgpr {sgpr}
  .amdhsa_accum_offset {accum}
  .amdhsa_group_segment_fixed_size 0
  .amdhsa_kernarg_size 80
  .amdhsa_user_sgpr_count 2
  .amdhsa_user_sgpr_kernarg_segment_ptr 1
  .amdhsa_system_sgpr_workgroup_id_x 1
  .amdhsa_float_denorm_mode_32 3
  .amdhsa_float_denorm_mode_16_64 3
.end_amdhsa_kernel
"""


class RA:
    def __init__(self, start, limit=256):
        self.n = start
        self.limit = limit

    def get(self, cnt=1, align=1):
        self.n = (self.n + align - 1) // align * align
        r = self.n
        self.n += cnt
        assert self.n <= self.limit, (self.n, self.limit)
        return r


def setexec(a, n):
    m = (1 << n) - 1
    a.op(f's_mov_b32 exec_lo, {m & 0xffffffff:#x}')
    a.op(f's_mov_b32 exec_hi, {m >> 32:#x}')


def dpp_reduce(a, regs, fill=None):
    steps = ['row_shr:1 row_mask:0xf bank_mask:0xf bound_ctrl:0',
             'row_shr:2 row_mask:0xf bank_mask:0xf bound_ctrl:0',
             'row_shr:4 row_mask:0xf bank_mask:0xf bound_ctrl:0',
             'row_shr:8 row_mask:0xf bank_mask:0xf bound_ctrl:0',
             'row_bcast:15 row_mask:0xa bank_mask:0xf',
             'row_bcast:31 row_mask:0xc bank_mask:0xf']
    for st in steps:
        for x in regs:
            a.op(f'v_add_f32_dpp v{x}, v{x}, v{x} {st}')


def poll(a, name, srdn, vaddr, sbase, thr, vt, lanes=16):
    saved = [list(x) for x in a.vm]
    with nospr(a):
        a.op('s_mov_b32 s58, 0')
        setexec(a, lanes)
        a.label(name, reset=True)
        a.op(f'buffer_load_dword v{vt}, v{vaddr}, s[{srdn}:{srdn+3}], {sbase} offen sc1')
        a.op('s_add_u32 s58, s58, 1')
        a.op(f's_cmp_ge_u32 s58, {SPIN_MAX}')
        a.op(f's_cbranch_scc1 {name}_out')
        a.op('s_waitcnt vmcnt(0)')
        a.op(f'v_cmp_gt_u32 vcc, {thr}, v{vt}')
        a.op('s_nop 4')
        a.op(f's_cbranch_vccnz {name}')
        a.label(name + '_out', reset=True)
        a.op('s_waitcnt vmcnt(0)')
        a.op('s_mov_b64 exec, -1')
    return saved


class Item:
    def __init__(self, cost, fn, ready=0, cond=None):
        self.cost, self.fn, self.ready, self.cond = cost, fn, ready, cond


wd = lambda i, am: (2 * i + am) * 4


def gen_p(a):
    name = NAME + '_kernel'
    a.raw(f'.globl {name}')
    a.raw('.p2align 8')
    a.raw(f'.type {name},@function')
    a.label(name, reset=True)
    stamp(a, 'start')
    a.op('s_cmp_ge_u32 s2, 256')
    a.op('s_cbranch_scc1 p_done')
    a.op('s_load_dwordx16 s[36:51], s[0:1], 0')
    a.op('s_load_dwordx4 s[52:55], s[0:1], 64')
    a.op('s_and_b32 s4, s2, 1')
    a.op('s_lshl_b32 s4, s4, 3')
    a.op('s_bfe_u32 s5, s2, 0x30003')
    a.op('s_add_u32 s4, s4, s5')
    a.op('s_bfe_u32 s5, s2, 0x20001')
    a.op('s_lshl_b32 s5, s5, 2')
    a.op('s_lshr_b32 s6, s2, 6')
    a.op('s_add_u32 s5, s5, s6')
    a.op('s_and_b32 s6, s2, 7')
    a.op('s_lshl_b32 s6, s6, 2')
    a.op('s_bfe_u32 s7, s2, 0x20003')
    a.op('s_add_u32 s6, s6, s7')
    a.op('s_lshr_b32 s7, s2, 5')
    a.op('s_and_b32 s56, s2, 7')
    a.op('s_lshl_b32 s56, s56, 5')
    a.op('s_lshr_b32 s57, s2, 3')
    a.op('s_add_u32 s56, s56, s57')

    lane, n, g, vl16, p, vwd = 1, 2, 3, 4, 5, 6
    vwr, vpl, vpt, tA, tB = 10, 11, 12, 13, 14
    a.op(f'v_lshrrev_b32 v{g}, 6, v0')
    a.op(f'v_and_b32 v{lane}, 63, v0')
    a.op(f'v_readfirstlane_b32 s3, v{g}')
    a.op(f'v_and_b32 v{n}, 15, v0')
    a.op(f'v_lshrrev_b32 v{g}, 4, v{lane}')
    a.op(f'v_lshlrev_b32 v{vl16}, 4, v{lane}')
    a.op(f'v_lshlrev_b32 v{vpl}, 8, v{lane}')
    a.op(f'v_lshl_add_u32 v{p}, s3, 4, v{n}')

    CT = RA(128, 240)
    RT = RA(16, 56)
    WK = RA(56, 128)
    scr = RA(88, 128)
    nf, gf, sg = scr.get(), scr.get(), scr.get()
    ang = scr.get(8)
    co = scr.get(8)
    si = scr.get(8)
    vb = 240
    a.op(f'v_lshrrev_b32 v{vb}, 1, v{lane}')
    a.op(f'v_mul_u32_u24 v{vb}, {16*3584}, v{vb}')
    a.op(f'v_and_b32 v{tA}, 1, v{lane}')
    a.op(f'v_lshl_add_u32 v{vb}, v{tA}, 4, v{vb}')
    a.op(f'v_lshlrev_b32 v{vb+1}, 4, v0')
    a.op(f'v_mov_b32 v{vb+2}, 4096')
    a.op(f'v_mov_b32 v{vb+3}, 0')
    a.op(f'v_cvt_f32_u32 v{nf}, v{n}')
    a.op(f'v_cvt_f32_u32 v{gf}, v{g}')
    a.op(f'v_mul_f32 v{tA}, {f2u(1/32)}, v{nf}')
    a.op(f'v_mul_f32 v{gf}, 4.0, v{gf}')
    a.op(f'v_mul_f32 v{ang}, v{tA}, v{gf}')
    for j in range(1, 4):
        a.op(f'v_add_f32 v{ang+j}, v{ang+j-1}, v{tA}')
    a.op(f'v_and_b32 v{sg}, 1, v{n}')
    a.op(f'v_mul_u32_u24 v{sg}, 0x8000, v{sg}')
    a.op(f'v_lshl_or_b32 v{sg}, v{sg}, 16, v{sg}')
    for j in range(4):
        a.op(f'v_cos_f32 v{co+j}, v{ang+j}')
        a.op(f'v_sin_f32 v{si+j}, v{ang+j}')
    f32 = {ty: {nm: [CT.get(4, 4), CT.get(4, 4)] for nm in 'CSN'} for ty in ('f16', 'bf16')}

    def f32tab(ty):
        d = f32[ty]
        cvt = 'v_cvt_pk_f16_f32' if ty == 'f16' else 'v_cvt_pk_bf16_f32'
        for nm in 'CSN':
            b0 = d[nm][0]
            src, sgn = (co, '') if nm == 'C' else (si, '' if nm == 'S' else '-')
            a.op(f'{cvt} v{b0}, {sgn}v{src}, {sgn}v{src+1}')
            a.op(f'{cvt} v{b0+1}, {sgn}v{src+2}, {sgn}v{src+3}')
        for nm in 'CSN':
            b0, b1 = d[nm]
            for k in range(2):
                a.op(f'v_xor_b32 v{b0+2+k}, v{sg}, v{b0+k}')
            for k in range(4):
                a.op(f'v_xor_b32 v{b1+k}, 0x80000000, v{b0+k}')
    f32tab('f16')
    f32tab('bf16')
    a.op('s_lshl_b32 s57, s3, 11')
    a.op('s_mov_b32 m0, s57')
    a.op('s_waitcnt lgkmcnt(0)')
    stamp(a, 'karg')
    srd(a, 8, 36, 2048 * 1024)
    a.op('s_lshl_b32 s36, s2, 13')
    a.op('s_add_u32 s36, s36, s57')
    a.op(f'buffer_load_dwordx4 v{vl16}, s[8:11], s36 offen lds')
    a.op(f'buffer_load_dwordx4 v{vl16}, s[8:11], s36 offen offset:1024 lds')
    tok_x = a.vm_tok()
    srd(a, 16, 38, 2048 * 514)
    srd(a, 20, 40, 2048 * 514)
    a.op('s_mul_i32 s36, s2, 4112')
    a.op('s_lshl_b32 s37, s3, 10')
    a.op(f's_add_u32 m0, s37, {WRAW}')
    srd(a, 12, 54, WS_END)
    a.op(f'buffer_load_dwordx4 v{vb+1}, s[16:19], s36 offen lds')
    a.op(f's_add_u32 m0, s37, {WRAW+4352}')
    srd(a, 32, 52, 256)
    a.op(f'buffer_load_dwordx4 v{vb+1}, s[20:23], s36 offen lds')
    a.op('s_mov_b64 exec, 1')
    a.op(f's_mov_b32 m0, {WRAW+4096}')
    a.op('s_nop 0')
    a.op(f'buffer_load_dwordx4 v{vb+2}, s[16:19], s36 offen lds')
    a.op(f's_mov_b32 m0, {WRAW+4352+4096}')
    a.op('s_nop 0')
    a.op(f'buffer_load_dwordx4 v{vb+2}, s[20:23], s36 offen lds')
    a.op('s_mov_b64 exec, -1')
    tok_w = a.vm_tok()
    a.op('s_lshl_b32 s36, s2, 2')
    a.op('s_add_u32 s59, s36, s3')
    a.op('s_cmp_lg_u32 s59, 3')
    a.op('s_cbranch_scc1 p_noz')
    a.op(f's_mov_b32 s36, {SY1:#x}')
    a.op(f'buffer_store_dword v{vb+3}, v{vpl}, s[12:15], s36 offen sc1')
    a.op(f's_mov_b32 s36, {SY1+16384:#x}')
    a.op(f'buffer_store_dword v{vb+3}, v{vpl}, s[12:15], s36 offen sc1')
    a.vm.pop()
    a.vm.pop()
    a.vmseq -= 2
    a.label('p_noz')
    a.op('s_cmp_ge_u32 s56, 112')
    a.op('s_cselect_b32 s24, s46, s44')
    a.op('s_cselect_b32 s25, s47, s45')
    a.op('s_cselect_b32 s36, 112, 0')
    a.op('s_cselect_b32 s41, 16, 0')
    a.op('s_sub_u32 s40, s56, s36')
    srd(a, 24, 24, 512 * 3584)
    a.op('s_sub_u32 s36, s56, 224')
    a.op('s_lshr_b32 s37, s36, 1')
    a.op('s_add_u32 s37, s37, 112')
    a.op('s_and_b32 s36, s36, 1')
    a.op('s_lshl_b32 s36, s36, 4')
    a.op('s_cmp_ge_u32 s56, 224')
    a.op('s_cselect_b32 s38, 0, s40')
    a.op('s_cselect_b32 s40, s37, s40')
    a.op('s_cselect_b32 s41, s36, s41')
    a.op('s_mul_i32 s36, s3, 14336')
    a.op('s_lshl_b32 s38, s38, 5')
    a.op('s_add_u32 s36, s36, s38')
    a.op('s_lshl_b32 s42, s3, 12')
    for q in range(4):
        a.op(f's_add_u32 m0, s42, {IM1+1024*q}')
        a.op(f's_add_u32 s37, s36, {3584*q}')
        a.op(f'buffer_load_dwordx4 v{vb}, s[24:27], s37 offen lds')
    tok_b = a.vm_tok()
    srd(a, 28, 48, 1792 * 1024)
    srd(a, 36, 50, 2048 * 1024)
    for q_ in range(7):
        a.op(f's_add_u32 s43, s7, {q_}')
        a.op('s_sub_u32 s44, s43, 7')
        a.op('s_cmp_ge_u32 s43, 7')
        a.op('s_cselect_b32 s43, s44, s43')
        a.op(f's_lshl_b32 s{48+q_}, s43, 12')
    rC, rN = f32['f16']['C'], f32['f16']['N']
    rtc, rts, rA2, rsc = RT.get(8, 2), RT.get(8, 2), RT.get(4, 4), RT.get(4, 2)
    a.op(f'v_cmp_eq_u32 vcc, 0, v{n}')
    a.op(f'v_add_f32 v{tA}, {f2u(16.0)}, v{nf}')
    a.op(f'v_mov_b32 v{tB}, {f2u(256.0)}')
    a.op(f'v_cndmask_b32 v{tB}, v{nf}, v{tB}, vcc')
    a.op(f'v_mul_f32 v{tA}, {f2u(1/512)}, v{tA}')
    a.op(f'v_mul_f32 v{tB}, {f2u(1/512)}, v{tB}')
    a.op(f'v_mul_f32 v{ang}, v{tB}, v{gf}')
    a.op(f'v_mul_f32 v{ang+4}, v{tA}, v{gf}')
    for i in range(1, 4):
        a.op(f'v_add_f32 v{ang+i}, v{ang+i-1}, v{tB}')
        a.op(f'v_add_f32 v{ang+4+i}, v{ang+4+i-1}, v{tA}')
    for i in range(8):
        a.op(f'v_cos_f32 v{rtc+i}, v{ang+i}')
        a.op(f'v_sin_f32 v{rts+i}, v{ang+i}')
    a.op(f'v_mov_b32 v{tA}, -1.0')
    a.op(f'v_cndmask_b32 v{rsc+1}, 1.0, v{tA}, vcc')
    a.op(f'v_cndmask_b32 v{rsc+3}, 1.0, v{tA}, vcc')
    a.op(f'v_mov_b32 v{rsc+2}, 1.0')
    a.op(f'v_cmp_eq_u32 vcc, 0, v{lane}')
    a.op(f'v_mov_b32 v{tA}, {f2u(math.sqrt(0.5))}')
    a.op(f'v_lshrrev_b32 v{tB}, 1, v{n}')
    a.op(f'v_cndmask_b32 v{rsc}, 1.0, v{tA}, vcc')
    a.op(f'v_and_b32 v{tA}, 1, v{n}')
    a.op(f'v_cvt_f32_u32 v{tB}, v{tB}')
    a.op(f'v_cvt_f32_u32 v{tA}, v{tA}')
    a.op(f'v_mul_f32 v{tB}, {f2u(1/16)}, v{tB}')
    a.op(f'v_mul_f32 v{tA}, {f2u(0.25)}, v{tA}')
    a.op(f'v_fma_f32 v{ang}, v{tB}, v{gf}, v{tA}')
    for i in range(1, 4):
        a.op(f'v_add_f32 v{ang+i}, v{ang+i-1}, v{tB}')
    for i in range(4):
        a.op(f'v_sin_f32 v{ang+4+i}, v{ang+i}')
        a.op(f'v_cos_f32 v{ang+i}, v{ang+i}')
    for i in range(4):
        a.op(f'v_cvt_pk_f16_f32 v{rA2+i}, v{ang+2*i}, v{ang+2*i+1}')

    def rowfft(xs, d1s, outs):
        for x, d1 in zip(xs, d1s):
            for T in range(2):
                a.op(f'v_mfma_f32_16x16x32_f16 {vr(d1+8*T,4)}, {vr(x,4)}, {vr(rC[T],4)}, 0')
                a.op(f'v_mfma_f32_16x16x32_f16 {vr(d1+8*T+4,4)}, {vr(x,4)}, {vr(rN[T],4)}, 0')
        for d1, o in zip(d1s, outs):
            for T in range(2):
                re, im = d1 + 8 * T, d1 + 8 * T + 4
                for h in range(2):
                    c = vr(rtc + 4 * T + 2 * h, 2)
                    a.op(f'v_pk_mul_f32 {vr(o+2*h,2)}, {vr(re+2*h,2)}, {c}')
                    a.op(f'v_pk_mul_f32 {vr(o+4+2*h,2)}, {vr(im+2*h,2)}, {c}')
                for h in range(2):
                    s = vr(rts + 4 * T + 2 * h, 2)
                    a.op(f'v_pk_fma_f32 {vr(o+2*h,2)}, {vr(im+2*h,2)}, {s}, {vr(o+2*h,2)}')
                    a.op(f'v_pk_fma_f32 {vr(o+4+2*h,2)}, {vr(re+2*h,2)}, {s}, {vr(o+4+2*h,2)} neg_lo:[1,0,0] neg_hi:[1,0,0]')
                for k in range(4):
                    a.op(f'v_cvt_pk_f16_f32 v{d1+8*T+k}, v{o+2*k}, v{o+2*k+1}')
            for T in range(2):
                a.op(f'v_mfma_f32_16x16x32_f16 {vr(o+4*T,4)}, {vr(rA2,4)}, {vr(d1+8*T,4)}, 0')

    F = {ty: {nm: [CT.get(4, 4), CT.get(4, 4)] for nm in 'CSN'} for ty in ('f16', 'bf16')}
    twc, tws = CT.get(8, 2), CT.get(8, 2)
    a.op(f'v_cvt_f32_u32 v{tA}, v{p}')
    a.op(f'v_mul_f32 v{tA}, {f2u(1/64)}, v{tA}')
    a.op(f'v_mul_f32 v{ang}, v{tA}, v{gf}')
    a.op(f'v_fmamk_f32 v{ang+4}, v{tA}, {f2u(16.0)}, v{ang}')
    for i in range(1, 4):
        a.op(f'v_add_f32 v{ang+i}, v{ang+i-1}, v{tA}')
        a.op(f'v_add_f32 v{ang+4+i}, v{ang+4+i-1}, v{tA}')
    for j in range(8):
        a.op(f'v_cos_f32 v{co+j}, v{ang+j}')
        a.op(f'v_sin_f32 v{si+j}, v{ang+j}')
    for ty in ('f16', 'bf16'):
        cvt = 'v_cvt_pk_f16_f32' if ty == 'f16' else 'v_cvt_pk_bf16_f32'
        for k in range(4):
            a.op(f'{cvt} v{F[ty]["C"][0]+k}, v{co+2*k}, v{co+2*k+1}')
            a.op(f'{cvt} v{F[ty]["S"][0]+k}, v{si+2*k}, v{si+2*k+1}')
            a.op(f'{cvt} v{F[ty]["N"][0]+k}, -v{si+2*k}, -v{si+2*k+1}')
        for nm in 'CSN':
            for k in range(4):
                a.op(f'v_xor_b32 v{F[ty][nm][1]+k}, v{sg}, v{F[ty][nm][0]+k}')
    for j in range(8):
        a.op(f'v_mul_f32 v{ang+j}, {f2u(1/32)}, v{ang+j}')
    for j in range(8):
        a.op(f'v_cos_f32 v{twc+j}, v{ang+j}')
        a.op(f'v_sin_f32 v{tws+j}, v{ang+j}')
    alpha = f2u(2.0 ** -5.5)
    for j in range(8):
        a.op(f'v_mul_f32 v{twc+j}, {alpha}, v{twc+j}')
        a.op(f'v_mul_f32 v{tws+j}, {alpha}, v{tws+j}')
    a.op(f'v_lshrrev_b32 v{tA}, 5, v{lane}')
    a.op(f'v_lshlrev_b32 v{vwd}, 12, v{tA}')
    a.op(f'v_bfe_u32 v{tA}, v{lane}, 2, 2')
    a.op(f'v_lshl_add_u32 v{vwd}, v{tA}, 10, v{vwd}')
    a.op(f'v_lshlrev_b32 v{vwr}, 6, v{tA}')
    a.op(f'v_xor_b32 v{tA}, s3, v{g}')
    a.op(f'v_and_b32 v{tA}, 1, v{tA}')
    a.op(f'v_lshl_add_u32 v{vwd}, v{tA}, 6, v{vwd}')
    a.op(f'v_and_b32 v{tA}, 3, v{lane}')
    a.op(f'v_lshl_add_u32 v{vwd}, v{tA}, 4, v{vwd}')
    a.op(f's_mul_i32 s43, s3, {448*1024}')
    a.op('s_lshl_b32 s44, s7, 7')
    a.op('s_add_u32 s43, s43, s44')
    a.op(f'v_add_u32 v{vwd}, s43, v{vwd}')
    for k in range(1, 4):
        a.op(f'v_add_u32 v{vwd+k}, {k*7168}, v{vwd}')
    a.op(f'v_lshrrev_b32 v{tB}, 5, v{lane}')
    a.op(f'v_lshl_add_u32 v{vwr}, v{tB}, 10, v{vwr}')
    a.op(f'v_and_b32 v{tB}, 1, v{lane}')
    a.op(f'v_lshl_add_u32 v{vwr}, v{tB}, 5, v{vwr}')
    a.op(f'v_and_b32 v{tB}, 1, v{g}')
    a.op(f'v_lshl_add_u32 v{vwr}, v{tB}, 4, v{vwr}')
    a.op(f'v_bfe_u32 v{tB}, v{lane}, 1, 1')
    a.op(f'v_lshl_add_u32 v{vwr}, v{tB}, 3, v{vwr}')
    a.op('s_mul_i32 s55, s3, 20480')
    a.op(f's_add_u32 s55, s55, {WST}')

    def wd_dma_items(i0, i1, sbase, vsrc4):
        q = []
        for P in range(i0 // 2, i1 // 2):
            for k in range(4):
                def go(P=P, k=k):
                    if k == 0:
                        a.op(f's_lshl_b32 s47, s{48+(P>>1)}, 4')
                        if P & 1:
                            a.op('s_add_u32 s47, s47, 32768')
                        a.op(f's_add_u32 m0, s{sbase}, {(P - i0//2)*4096}')
                    a.op(f'buffer_load_dwordx4 v{vsrc4+k}, s[28:31], s47 offen offset:{1024*k} lds')
                q.append(go)
        return q

    def wd_reads(i0, i1, vaddr):
        for i in range(i0, i1):
            for am in range(2):
                for q_ in range(2):
                    a.op(f'ds_read_b64_tr_b16 {ar(wd(i,am)+2*q_,2)}, v{vaddr} offset:{(i-i0)*2048+q_*512+am*256}')

    raw = [WK.get(4, 4) for _ in range(4)]
    xf = [WK.get(8, 4) for _ in range(2)]
    d1 = [WK.get(16, 4) for _ in range(2)]
    st = WK.get(8, 2)
    wc = 240
    ad, ad2, kfa, rda, zoff = RT.get(), RT.get(), RT.get(), RT.get(), RT.get()
    wpa, bw, br, bo_, bg = RT.get(), RT.get(), RT.get(), RT.get(), RT.get()
    a.op(f'v_lshl_add_u32 v{ad}, v{lane}, 3, s57')
    a.op(f'v_lshl_add_u32 v{ad2}, v{lane}, 5, s57')
    a.op(f'v_bfe_u32 v{kfa}, v0, 2, 4')
    a.op(f'v_bfe_u32 v{tA}, v0, 1, 1')
    a.op(f'v_lshl_add_u32 v{kfa}, v{tA}, 4, v{kfa}')
    a.op(f'v_and_b32 v{tA}, 1, v0')
    a.op(f'v_lshl_add_u32 v{tA}, s3, 1, v{tA}')
    a.op(f'v_lshlrev_b32 v{tA}, 5, v{tA}')
    a.op(f'v_cmp_eq_u32 vcc, 0, v{kfa}')
    a.op(f'v_add_u32 v{kfa}, v{kfa}, v{tA}')
    a.op(f'v_sub_u32 v{tA}, 0x100, v{tA}')
    a.op(f'v_cndmask_b32 v{kfa}, v{kfa}, v{tA}, vcc')
    a.op(f'v_lshlrev_b32 v{kfa}, 1, v{kfa}')
    a.op(f'v_lshlrev_b32 v{wpa}, 3, v0')
    a.op(f'v_lshrrev_b32 v{tA}, 2, v{lane}')
    a.op(f'v_lshl_add_u32 v{tA}, s3, 6, v{tA}')
    a.op(f'v_lshlrev_b32 v{rda}, 3, v{tA}')
    a.op(f'v_and_b32 v{tB}, 1, v{lane}')
    a.op(f'v_lshl_add_u32 v{rda}, v{tB}, 2, v{rda}')
    a.op(f'v_bfe_u32 v{tB}, v{lane}, 1, 1')
    a.op(f'v_mul_u32_u24 v{tB}, {WPL-XR}, v{tB}')
    a.op(f'v_add_u32 v{rda}, v{rda}, v{tB}')
    a.op(f's_mov_b32 s43, {CS}')
    a.op(f'v_mul_lo_u32 v{zoff}, v{tA}, s43')
    a.op(f'v_and_b32 v{tB}, 3, v{lane}')
    a.op(f'v_lshl_add_u32 v{zoff}, v{tB}, 4, v{zoff}')
    a.op(f'v_and_b32 v{tA}, 3, v{n}')
    a.op(f'v_bfe_u32 v{tB}, v{n}, 2, 1')
    a.op(f'v_lshl_add_u32 v{tA}, v{tB}, 3, v{tA}')
    a.op(f'v_lshrrev_b32 v{tB}, 3, v{n}')
    a.op(f'v_lshl_add_u32 v{tA}, v{tB}, 2, v{tA}')
    a.op(f'v_mul_u32_u24 v{bw}, 1040, v{tA}')
    a.op(f'v_lshl_add_u32 v{bw}, v{g}, 8, v{bw}')
    a.op('s_lshl_b32 s43, s3, 6')
    a.op(f'v_add_u32 v{bw}, s43, v{bw}')
    a.op(f'v_mul_u32_u24 v{bo_}, 272, v{lane}')
    a.op(f'v_add_u32 v{bo_}, s43, v{bo_}')
    a.op(f'v_lshl_add_u32 v{tA}, s3, 4, v{g}')
    a.op(f'v_mul_u32_u24 v{br}, 272, v{tA}')
    a.op(f'v_lshl_add_u32 v{br}, v{n}, 4, v{br}')
    a.op(f'v_lshlrev_b32 v{bg}, 9, v{tA}')
    a.op(f'v_lshl_add_u32 v{bg}, v{n}, 4, v{bg}')
    a.op('s_cmp_lg_u32 s59, 3')
    a.op('s_cbranch_scc1 p_noflag')
    a.op('s_waitcnt vmcnt(4)')
    a.op(f'v_mov_b32 v{tA}, 1')
    a.op('s_mov_b64 exec, 1')
    a.op(f'buffer_store_dword v{tA}, v{vb+3}, s[32:35], 0 offen sc1')
    a.op('s_mov_b64 exec, -1')
    a.vmseq -= 1
    a.label('p_noflag')
    a.vm = [[] for _ in range(10)]

    a.wait_vm_tok(tok_x, force=True)
    stamp(a, 'xdata')
    for k in range(2):
        a.op(f'ds_read_b64_tr_b16 {vr(raw[k],2)}, v{ad} offset:{XR+1024*k}')
        a.op(f'ds_read_b64_tr_b16 {vr(raw[k]+2,2)}, v{ad} offset:{XR+1024*k+512}')
    a.wait_vm_tok(tok_w, force=True)
    a.op('s_barrier')
    ix = lambda rr: 2 * (rr & 3) + (rr >> 2)
    cq = []
    for rr in (0, 4, 1, 5, 2, 6, 3, 7):
        cq.append(f'ds_read_u16 v{wc+ix(rr)}, v{kfa} offset:{WRAW+rr*514}')
        cq.append(f'ds_read_u16 v{wc+8+ix(rr)}, v{kfa} offset:{WRAW+4352+rr*514}')
    for t_ in cq[:10]:
        a.op(t_)
    a.wait_lg(vr(raw[0], 8))
    for k in range(2):
        a.op(f'v_readfirstlane_b32 s{44+2*k}, v{raw[k]}')
    for k in range(2):
        for i in range(4):
            a.op(f'v_lshlrev_b32 v{xf[k]+2*i}, 16, v{raw[k]+i}')
            a.op(f'v_and_b32 v{xf[k]+2*i+1}, 0xffff0000, v{raw[k]+i}')
        a.op(f's_lshl_b32 s{44+2*k}, s{44+2*k}, 16')
    for t_ in cq[10:]:
        a.op(t_)
    S_, Q_ = d1[0], d1[0] + 4
    for k in range(2):
        for i in range(4):
            a.op(f'v_pk_add_f32 {vr(xf[k]+2*i,2)}, {vr(xf[k]+2*i,2)}, s[{44+2*k}:{45+2*k}] op_sel_hi:[1,0] neg_lo:[0,1] neg_hi:[0,1]')
    for k in range(2):
        a.op(f'v_pk_add_f32 {vr(S_+2*k,2)}, {vr(xf[k],2)}, {vr(xf[k]+2,2)}')
        a.op(f'v_pk_mul_f32 {vr(Q_+2*k,2)}, {vr(xf[k],2)}, {vr(xf[k],2)}')
    for i in range(1, 4):
        for k in range(2):
            if i > 1:
                a.op(f'v_pk_add_f32 {vr(S_+2*k,2)}, {vr(S_+2*k,2)}, {vr(xf[k]+2*i,2)}')
            a.op(f'v_pk_fma_f32 {vr(Q_+2*k,2)}, {vr(xf[k]+2*i,2)}, {vr(xf[k]+2*i,2)}, {vr(Q_+2*k,2)}')
    for k in range(2):
        a.op(f'v_add_f32 v{st+k}, v{S_+2*k}, v{S_+2*k+1}')
        a.op(f'v_add_f32 v{st+2+k}, v{Q_+2*k}, v{Q_+2*k+1}')
    dpp_reduce(a, [st, st + 1, st + 2, st + 3])
    for k in range(4):
        a.op(f'v_readlane_b32 s{16+k}, v{st+k}, 63')
    a.op('s_waitcnt lgkmcnt(0)')
    for k in range(8):
        a.op(f'v_lshl_or_b32 v{wc+k}, v{wc+8+k}, 16, v{wc+k}')
    for pl in range(4):
        a.op(f'ds_write_b64 v{wpa}, {vr(wc+2*pl,2)} offset:{WPL+2048*pl}')
    mean, sd = st + 4, st + 6
    c512 = tA
    a.op(f'v_mov_b32 v{c512}, {f2u(1/512)}')
    a.op(f'v_mov_b32 v{tB}, {f2u(1e-5)}')
    prs = [S_, S_ + 2]
    for k in range(2):
        a.op(f'v_mul_f32 v{mean+k}, s{16+k}, v{c512}')
        a.op(f'v_mul_f32 v{sd+k}, s{18+k}, v{c512}')
    for k in range(2):
        a.op(f'v_fma_f32 v{sd+k}, -v{mean+k}, v{mean+k}, v{sd+k}')
    for k in range(2):
        a.op(f'v_max_f32 v{sd+k}, 0, v{sd+k}')
    for k in range(2):
        a.op(f'v_add_f32 v{sd+k}, v{sd+k}, v{tB}')
    for k in range(2):
        a.op(f'v_rsq_f32 v{st+k}, v{sd+k}')
    for k in range(2):
        a.op(f'v_mul_f32 v{prs[k]}, {f2u(1/16)}, v{st+k}')
    for k in range(2):
        a.op(f'v_mul_f32 v{prs[k]+1}, -v{mean+k}, v{prs[k]}')
    for k in range(2):
        for i in range(4):
            a.op(f'v_pk_fma_f32 {vr(xf[k]+2*i,2)}, {vr(xf[k]+2*i,2)}, {vr(prs[k],2)}, {vr(prs[k],2)} op_sel:[0,0,1] op_sel_hi:[1,0,1]')
        for i in range(4):
            a.op(f'v_cvt_pk_f16_f32 v{raw[k]+i}, v{xf[k]+2*i}, v{xf[k]+2*i+1}')
    for k in range(2):
        a.op(f'v_mul_f32 v{sd+k}, v{sd+k}, v{st+k}')
        a.op(f'v_add_f32 v{mean+k}, s{44+2*k}, v{mean+k}')
    a.op('s_lshl_b32 s43, s3, 3')
    a.op(f'v_mov_b32 v{tA}, s43')
    rowfft(raw[:2], d1, xf)
    a.op(f'ds_write_b64 v{tA}, {vr(mean,2)} offset:{STL}')
    a.op(f'ds_write_b64 v{tA}, {vr(sd,2)} offset:{STL+32}')
    a.op(f'v_mov_b32 v{st}, -1.0')
    for k in range(1, 4):
        a.op(f'v_mov_b32 v{st+k}, -1.0')
    a.op(f'v_mov_b32 v{tB}, 0')
    a.op(f'v_lshlrev_b32 v{tA}, 16, v{lane}')
    a.op('s_lshl_b32 s43, s4, 4')
    a.op('s_add_u32 s43, s43, s5')
    a.op('s_lshl_b32 s44, s43, 9')
    a.op(f's_add_u32 s44, s44, {SSQ:#x}')
    a.op('s_lshl_b32 s45, s2, 8')
    a.op(f's_add_u32 s45, s45, {SYZ:#x}')
    a.op('s_cmp_lg_u32 s3, 1')
    a.op('s_cbranch_scc1 p_nozero')
    setexec(a, 32)
    a.op(f'buffer_store_dwordx4 {vr(st,4)}, v{vl16}, s[12:15], s44 offen sc1')
    setexec(a, 3)
    a.op(f'buffer_store_dword v{tB}, v{tA}, s[12:15], s45 offen sc1')
    a.op('s_mov_b64 exec, -1')
    a.vm.pop()
    a.vm.pop()
    a.vmseq -= 2
    a.label('p_nozero')
    for k in range(2):
        for h in range(2):
            a.op(f'v_pk_mul_f32 {vr(xf[k]+2*h,2)}, {vr(xf[k]+2*h,2)}, {vr(rsc+2*h,2)}')
    pk = d1[1]
    for e_ in range(8):
        a.op(f'v_cvt_pk_f16_f32 v{pk+e_}, v{xf[0]+e_}, v{xf[1]+e_}')
    a.op(f'ds_write_b128 v{ad2}, {vr(pk,4)} offset:{XR}')
    a.op(f'ds_write_b128 v{ad2}, {vr(pk+4,4)} offset:{XR+16}')
    a.op('s_lshl_b32 s43, s2, 6')
    for i in range(1, 4):
        a.op(f's_add_u32 s{43+i}, s43, {16*i*CS}')
    a.op(f's_add_u32 s47, s43, {STAT:#x}')
    for i in range(1, 4):
        a.op(f'v_add_u32 v{st+i}, {128*i}, v{rda}')
    a.op('s_waitcnt lgkmcnt(0)')
    a.op('s_barrier')
    for i in range(4):
        ra_ = rda if i == 0 else st + i
        a.op(f'ds_read2st64_b32 {vr(wc+4*i,2)}, v{ra_} offset0:0 offset1:8')
        a.op(f'ds_read2st64_b32 {vr(wc+4*i+2,2)}, v{ra_} offset0:16 offset1:24')
    a.op(f'ds_read_b128 {vr(d1[0],4)}, v{vl16} offset:{STL}')
    for i in range(4):
        a.wait_lg(vr(wc + 4 * i, 4))
        a.op(f'buffer_store_dwordx4 {vr(wc+4*i,4)}, v{zoff}, s[12:15], s{43+i} offen sc1')
    a.op('s_waitcnt lgkmcnt(0)')
    a.op('s_cmp_lg_u32 s3, 2')
    a.op('s_cbranch_scc1 p_nostat')
    setexec(a, 4)
    a.op(f'buffer_store_dwordx4 {vr(d1[0],4)}, v{vl16}, s[12:15], s47 offen sc1')
    a.op('s_mov_b64 exec, -1')
    a.op('s_nop 0')
    a.label('p_nostat')
    a.vm.pop()
    a.vmseq -= 1
    a.op(f'v_mov_b32 v{tB}, 0')
    a.op('s_mov_b64 exec, 1')
    a.op(f'buffer_load_dword v{vpt}, v{tB}, s[32:35], 0 offen sc1')
    a.op('s_mov_b64 exec, -1')
    tok_a = a.vm_tok()
    stamp(a, 'astore')

    a.sprinkle = (E('SPR1', '14'), wd_dma_items(0, 10, 55, vwd))
    r1q = a.sprinkle[1]
    a.op(f'v_lshl_add_u32 v{ad}, v{lane}, 3, s42')
    a.wait_vm_tok(tok_b, force=True)
    for q in range(4):
        a.op(f'ds_read_b64_tr_b16 {vr(raw[q],2)}, v{ad} offset:{IM1+1024*q}')
        a.op(f'ds_read_b64_tr_b16 {vr(raw[q]+2,2)}, v{ad} offset:{IM1+1024*q+512}')
    for q in range(4):
        a.wait_lg(vr(raw[q], 4))
        a.op(f'ds_write_b128 v{bw}, {vr(raw[q],4)} offset:{IM2+16*q}')
    a.op('s_mul_i32 s43, s3, 4160')
    a.op(f'v_add_u32 v{ad}, s43, v{vl16}')
    a.op('s_waitcnt lgkmcnt(0)')
    a.op('s_barrier')
    for q in range(4):
        a.op(f'ds_read_b128 {vr(raw[q],4)}, v{ad} offset:{IM2+1040*q}')
    for q in range(4):
        a.op(f'v_mov_b32 v{st+q}, 0')
    a.op('s_waitcnt lgkmcnt(0)')
    with nospr(a):
        a.op('s_cmp_lt_u32 s56, 224')
        a.op('s_cbranch_scc1 p_bx')
        a.op('s_lshr_b32 s43, s41, 2')
        a.op('s_add_u32 s43, s43, s3')
        a.op('s_and_b32 s44, s43, 1')
        a.op('s_lshl_b32 s44, s44, 4')
        a.op('s_lshr_b32 s43, s43, 1')
        a.op('s_lshl_b32 s43, s43, 2')
        a.op('s_add_u32 s43, s43, s44')
        a.op('s_sub_u32 s44, s40, 112')
        a.op('s_lshl_b32 s44, s44, 5')
        a.op('s_add_u32 s43, s43, s44')
        a.op(f'v_lshl_add_u32 v{tA}, v{g}, 6, v{n}')
        a.op(f'v_subrev_u32 v{tA}, s43, v{tA}')
        a.op(f'v_mov_b32 v{xf[0]}, 0x3f80')
        a.op(f'v_mov_b32 v{xf[0]+1}, 0x3f800000')
        for q in range(4):
            for rr in range(4):
                off = 256 * (rr >> 1) + 32 * (rr & 1)
                a.op(f'v_cmp_eq_u32 vcc, {(q - off) & 0xffffffff:#x}, v{tA}')
                a.op(f'v_cndmask_b32 v{raw[q]+rr}, 0, v{xf[0]}, vcc')
                a.op(f'v_cmp_eq_u32 vcc, {(q - off - 16) & 0xffffffff:#x}, v{tA}')
                a.op(f'v_cndmask_b32 v{raw[q]+rr}, v{raw[q]+rr}, v{xf[0]+1}, vcc')
        a.label('p_bx')
    sdr = st + 4
    for i in range(4):
        for q in range(4):
            a.op(f'v_dot2_f32_bf16 v{st+q}, v{raw[q]+i}, v{raw[q]+i}, v{st+q}')
    dpp_reduce(a, [st + q for q in range(4)])
    for q in range(4):
        a.op(f'v_readlane_b32 s{16+q}, v{st+q}, 63')
    a.op(f'v_mov_b32 v{tA}, {f2u(1/512)}')
    a.op(f'v_mov_b32 v{tB}, {f2u(1e-30)}')
    for q in range(4):
        a.op(f'v_fma_f32 v{sdr+q}, s{16+q}, v{tA}, v{tB}')
    for q in range(4):
        a.op(f'v_rsq_f32 v{st+q}, v{sdr+q}')
    for q in range(4):
        a.op(f'v_mul_f32 v{sdr+q}, v{sdr+q}, v{st+q}')
        a.op(f'v_mul_f32 v{st+q}, {f2u(1/16)}, v{st+q}')
    for q in range(4):
        x = xf[q & 1]
        for i in range(4):
            a.op(f'v_lshlrev_b32 v{x+2*i}, 16, v{raw[q]+i}')
            a.op(f'v_and_b32 v{x+2*i+1}, 0xffff0000, v{raw[q]+i}')
        for i in range(4):
            a.op(f'v_pk_mul_f32 {vr(x+2*i,2)}, {vr(x+2*i,2)}, {vr(st+(q&2),2)} op_sel:[0,{q&1}] op_sel_hi:[1,{q&1}]')
        for i in range(4):
            a.op(f'v_cvt_pk_f16_f32 v{raw[q]+i}, v{x+2*i}, v{x+2*i+1}')

    def signal1():
        with nospr(a):
            a.wait_vm_tok(tok_a, force=True)
            a.op('s_barrier')
            a.op('s_cmp_lg_u32 s3, 0')
            a.op('s_cbranch_scc1 p_s1')
            a.op(f'v_readfirstlane_b32 s43, v{vpt}')
            a.op('s_cmp_lg_u32 s43, 0')
            a.op('s_cbranch_scc1 p_rdy')
            a.op(f'v_mov_b32 v{tB}, 0')
            sv = poll(a, 'p_poll0', 32, tB, '0', 1, vpt, lanes=1)
            a.vmseq -= 1
            a.label('p_rdy')
            a.op('s_and_b32 s43, s2, 15')
            a.op('s_lshl_b32 s43, s43, 8')
            a.op(f's_add_u32 s43, s43, {SY1:#x}')
            a.op(f'v_lshlrev_b32 v{tA}, 12, v{lane}')
            a.op(f'v_mov_b32 v{tB}, 1')
            setexec(a, 8)
            a.op(f'buffer_atomic_add v{tB}, v{tA}, s[12:15], s43 offen sc1')
            a.op('s_mov_b64 exec, -1')
            a.vmseq -= 1
            a.label('p_s1')
            a.vm = sv
            stamp(a, 'sig1')
    SIGP = E('SIGP', '1')
    if SIGP == 0:
        signal1()
    for half in range(2):
        rowfft(raw[2*half:2*half+2], d1, xf)
        for k in range(2):
            q = 2 * half + k
            for h in range(2):
                a.op(f'v_pk_mul_f32 {vr(xf[k]+2*h,2)}, {vr(xf[k]+2*h,2)}, {vr(rsc+2*h,2)}')
            for i in range(4):
                a.op(f'v_pk_mul_f32 {vr(xf[k]+2*i,2)}, {vr(xf[k]+2*i,2)}, {vr(sdr+(q&2),2)} op_sel:[0,{q&1}] op_sel_hi:[1,{q&1}]')
            for i in range(4):
                a.op(f'v_cvt_pk_bf16_f32 v{raw[q]+i}, v{xf[k]+2*i}, v{xf[k]+2*i+1}')
            a.op(f'ds_write_b128 v{bo_}, {vr(raw[q],4)} offset:{IM1+16*q}')
        if SIGP == half + 1:
            signal1()
    a.sprinkle = None
    while r1q:
        r1q.pop(0)()
    tok_r1 = a.vm_tok()
    a.op('s_lshl_b32 s43, s40, 15')
    a.op('s_lshl_b32 s44, s41, 4')
    a.op('s_add_u32 s43, s43, s44')
    a.op(f's_add_u32 s43, s43, {BH:#x}')
    a.op('s_add_u32 s44, s43, 4096')
    a.op('s_waitcnt lgkmcnt(0)')
    a.op('s_barrier')
    for i in range(4):
        a.op(f'ds_read_b128 {vr(raw[i],4)}, v{br} offset:{IM1+4*272*i}')
    for i in range(4):
        a.wait_lg(vr(raw[i], 4))
        a.op(f'buffer_store_dwordx4 {vr(raw[i],4)}, v{bg}, s[12:15], s{43+(i>>1)} offen offset:{2048*(i&1)} sc1')
    tok_bs = a.vm_tok()
    stamp(a, 'bstore')
    a.op('s_lshl_b32 s43, s40, 1')
    a.op('s_lshr_b32 s44, s41, 4')
    a.op('s_add_u32 s43, s43, s44')
    a.op('s_lshl_b32 s43, s43, 8')
    a.op(f's_add_u32 s40, s43, {FB:#x}')
    C = RA(16, 128)
    zn, sdv, wv = C.get(8, 4), C.get(8, 4), C.get(8, 4)
    za, d, e, bo, wf = C.get(32, 4), C.get(16, 4), C.get(16, 4), C.get(8, 4), C.get(16, 2)
    t0, t1, aw1, ard, aw2, ost, vwa = 240, 241, 242, 243, 244, 245, 246
    a.op(f'v_add_u32 v{vwa}, s55, v{vwr}')
    a.wait_vm_tok(tok_r1)
    wd_reads(0, 10, vwa)
    a.op(f'v_lshl_add_u32 v{t0}, v{p}, 2, v{g}')
    a.op(f'v_lshlrev_b32 v{ost}, 4, v{t0}')
    a.op(f'v_lshlrev_b32 v{t0}, 6, v{t0}')
    a.op(f'v_lshrrev_b32 v{tA}, 3, v{p}')
    a.op(f'v_lshlrev_b32 v{t1}, 6, v{tA}')
    a.op(f'v_and_b32 v{tA}, 7, v{p}')
    a.op(f'v_lshl_add_u32 v{t1}, v{tA}, 2, v{t1}')
    a.op(f'v_lshl_add_u32 v{t1}, v{g}, 11, v{t1}')
    a.op(f'v_lshrrev_b32 v{tA}, 1, v{g}')
    a.op(f'v_lshlrev_b32 v{aw1}, 11, v{tA}')
    a.op(f'v_lshl_add_u32 v{aw1}, v{p}, 5, v{aw1}')
    a.op(f'v_lshlrev_b32 v{aw2}, 3, v{tA}')
    a.op(f'v_lshl_add_u32 v{aw2}, v{p}, 5, v{aw2}')
    a.op(f'v_and_b32 v{tA}, 1, v{g}')
    a.op(f'v_lshl_add_u32 v{aw1}, v{tA}, 4, v{aw1}')
    a.op(f'v_lshl_add_u32 v{aw2}, v{tA}, 11, v{aw2}')
    a.op(f'v_lshlrev_b32 v{ard}, 3, v{lane}')
    a.op(f's_mul_i32 s16, s2, {CS}')
    a.op('s_add_u32 s17, s16, 8192')
    a.op(f's_mov_b32 s18, {STAT:#x}')
    a.op(f's_mul_i32 s20, s2, {2*HS}')
    a.op(f's_add_u32 s20, s20, {HT:#x}')
    a.op(f's_add_u32 s21, s20, {HS}')
    a.op('s_cmp_lg_u32 s2, 0')
    a.op('s_cselect_b32 s22, -1, 0')
    a.op('s_and_b32 s23, s2, 7')
    a.op('s_lshl_b32 s23, s23, 12')
    a.op(f's_add_u32 s43, s23, {SY1:#x}')
    a.op('s_waitcnt lgkmcnt(0)')
    a.op('s_cmp_lg_u32 s3, 0')
    a.op('s_cbranch_scc1 p_w1')
    sv = poll(a, 'p_poll1', 12, vpl, 's43', 16, vpt)
    a.vmseq -= 1
    a.label('p_w1', reset=True)
    a.vm = sv
    a.op('s_barrier')
    stamp(a, 'seen1')

    a.op(f'buffer_load_dwordx4 {vr(zn,4)}, v{t0}, s[12:15], s16 offen sc1')
    a.op(f'buffer_load_dwordx4 {vr(zn+4,4)}, v{t0}, s[12:15], s16 offen offset:16 sc1')
    for mt in range(2):
        for i in range(4):
            a.op(f'buffer_load_dword v{wv+4*mt+i}, v{t1}, s[12:15], s{16+mt} offen offset:{32+512*i} sc1')
    a.op(f'buffer_load_dwordx4 {vr(sdv,4)}, v{t0}, s[12:15], s18 offen offset:32 sc1')
    a.op(f'buffer_load_dwordx4 {vr(sdv+4,4)}, v{t0}, s[12:15], s18 offen offset:48 sc1')
    r2q = wd_dma_items(10, 20, 55, vwd)
    for _ in range(E('R2B', '4')):
        r2q.pop(0)()
    a.wait_vm(vr(zn, 8))
    stamp(a, 'zdata')
    a.op(f'ds_write_b128 v{aw1}, {vr(zn,4)}')
    a.op(f'ds_write_b128 v{aw1}, {vr(zn+4,4)} offset:4096')
    a.op('s_waitcnt lgkmcnt(0)')
    a.op('s_barrier')
    a.op('s_cmp_lg_u32 s3, 3')
    a.op('s_cbranch_scc1 p_nofb')
    a.op(f'v_mov_b32 v{tA}, 1')
    a.op(f'v_mov_b32 v{tB}, 0')
    a.op('s_mov_b64 exec, 1')
    a.op(f'buffer_store_dword v{tA}, v{tB}, s[12:15], s40 offen sc1')
    a.op('s_mov_b64 exec, -1')
    a.vm.pop()
    a.vmseq -= 1
    a.label('p_nofb')
    a.sprinkle = (E('SPR2', '9'), r2q)

    A = lambda mt, ks, part: za + ((mt * 2 + ks) * 2 + part) * 4
    D = lambda mt, part: d + (mt * 2 + part) * 4

    def stage64(base, ty, inverse):
        mf = f'v_mfma_f32_16x16x32_{ty}'
        with nospr(a):
            for mt in range(2):
                for ks in range(2):
                    for part in range(2):
                        for q_ in range(2):
                            a.op(f'ds_read_b64_tr_b16 {vr(A(mt,ks,part)+2*q_,2)}, v{ard} offset:{base+part*4096+mt*2048+ks*1024+q_*512}')
        T = F[ty]
        sp, sm = ('N', 'S') if inverse else ('S', 'N')
        for mt in range(2):
            for ks in range(2):
                a.wait_lg(vr(A(mt, ks, 0), 4))
                c0 = '0' if ks == 0 else None
                a.op(f'{mf} {vr(D(mt,0),4)}, {vr(A(mt,ks,0),4)}, {vr(T["C"][ks],4)}, {c0 or vr(D(mt,0),4)}')
                a.op(f'{mf} {vr(D(mt,1),4)}, {vr(A(mt,ks,0),4)}, {vr(T[sm][ks],4)}, {c0 or vr(D(mt,1),4)}')
                a.wait_lg(vr(A(mt, ks, 1), 4))
                a.op(f'{mf} {vr(D(mt,0),4)}, {vr(A(mt,ks,1),4)}, {vr(T[sp][ks],4)}, {vr(D(mt,0),4)}')
                a.op(f'{mf} {vr(D(mt,1),4)}, {vr(A(mt,ks,1),4)}, {vr(T["C"][ks],4)}, {vr(D(mt,1),4)}')

    def cmul(cr, ci, conj_neg, ty, dst):
        cvt = 'v_cvt_pk_f16_f32' if ty == 'f16' else 'v_cvt_pk_bf16_f32'
        neg = ' neg_lo:[1,0,0] neg_hi:[1,0,0]'
        for mt in range(2):
            re, im = D(mt, 0), D(mt, 1)
            er, ei = e + 8 * mt, e + 8 * mt + 4
            for h in range(2):
                c = vr(cr + 4 * mt + 2 * h, 2)
                a.op(f'v_pk_mul_f32 {vr(er+2*h,2)}, {vr(re+2*h,2)}, {c}')
                a.op(f'v_pk_mul_f32 {vr(ei+2*h,2)}, {vr(im+2*h,2)}, {c}')
            for h in range(2):
                s = vr(ci + 4 * mt + 2 * h, 2)
                a.op(f'v_pk_fma_f32 {vr(er+2*h,2)}, {vr(im+2*h,2)}, {s}, {vr(er+2*h,2)}' + ('' if conj_neg else neg))
                a.op(f'v_pk_fma_f32 {vr(ei+2*h,2)}, {vr(re+2*h,2)}, {s}, {vr(ei+2*h,2)}' + (neg if conj_neg else ''))
            for part, src in ((0, er), (1, ei)):
                for h in range(2):
                    a.op(f'{cvt} v{dst(mt,part)+h}, v{src+2*h}, v{src+2*h+1}')

    def stage32(ty, inverse):
        mf = f'v_mfma_f32_16x16x32_{ty}'
        T = f32[ty]
        sp, sm = ('N', 'S') if inverse else ('S', 'N')
        br_, bi_ = vr(bo, 4), vr(bo + 4, 4)
        for mt in range(2):
            a.op(f'{mf} {vr(D(mt,0),4)}, {vr(T["C"][mt],4)}, {br_}, 0')
            a.op(f'{mf} {vr(D(mt,1),4)}, {vr(T[sm][mt],4)}, {br_}, 0')
            a.op(f'{mf} {vr(D(mt,0),4)}, {vr(T[sp][mt],4)}, {bi_}, {vr(D(mt,0),4)}')
            a.op(f'{mf} {vr(D(mt,1),4)}, {vr(T["C"][mt],4)}, {bi_}, {vr(D(mt,1),4)}')

    bdst = lambda mt, part: bo + 4 * part + 2 * mt
    stage64(0, 'f16', False)
    a.wait_vm(vr(wv, 8))
    for j in range(8):
        a.op(f'v_lshlrev_b32 v{wf+j}, 16, v{wv+j}')
        a.op(f'v_and_b32 v{wf+8+j}, 0xffff0000, v{wv+j}')
    cmul(twc, tws, True, 'f16', bdst)
    stage32('f16', False)
    cmul(wf, wf + 8, False, 'bf16', bdst)
    stage32('bf16', True)
    cmul(twc, tws, False, 'bf16', bdst)
    for part in range(2):
        for mt in range(2):
            a.op(f'ds_write_b64 v{aw2}, {vr(bdst(mt,part),2)} offset:{8192+part*4096+mt*16}')
    a.sprinkle = None
    print('r2 leftover', len(r2q))
    while r2q:
        r2q.pop(0)()
    a.op('s_waitcnt lgkmcnt(0)')
    a.op('s_barrier')
    stage64(8192, 'bf16', True)
    a.wait_vm(vr(sdv, 8))
    for part in range(2):
        for mt in range(2):
            for i in range(4):
                k = 4 * mt + i
                a.op(f'v_fma_mix_f32 v{e+8*part+k}, v{zn+4*part+k//2}, v{sdv+k}, v{D(mt,part)+i} op_sel:[{k&1},0,0] op_sel_hi:[1,0,0]')
        for k in range(4):
            a.op(f'v_cvt_pk_bf16_f32 v{bo+4*part+k}, v{e+8*part+2*k}, v{e+8*part+2*k+1}')
        if part == 1:
            for k in range(4):
                a.op(f'v_and_b32 v{bo+4+k}, s22, v{bo+4+k}')
        a.op(f'buffer_store_dwordx4 {vr(bo+4*part,4)}, v{ost}, s[12:15], s{20+part} offen sc1')
    stamp(a, 'hstore')

    ACC, BFR, NBF, OUT, BHV = 0, 128, 10, 168, 184
    M = RA(200, 250)
    Ln, L16, u0, u1 = M.get(), M.get(), M.get(), M.get()
    vsrc = M.get(4)
    W4 = M.get(4)
    adr, adr2, adq, WR3 = M.get(), M.get(), M.get(), M.get()
    ssq = M.get(2, 2)
    tu = M.get(2, 2)
    rs = M.get(4, 4)
    r2 = M.get(4, 4)
    SQ = M.get(8, 4)
    vx, Pl, Pt, vsq, vsx = M.get(), M.get(), M.get(), M.get(), M.get()
    vh = M.get(2)
    NST = 14

    def bh(mi, t):
        sl = (t % NST) * 2 + mi
        return ar(160 + 4 * sl, 4) if sl < 24 else vr(BHV + 4 * (sl - 24), 4)

    a.op('s_lshl_b32 s43, s5, 12')
    a.op(f's_add_u32 s43, s43, {FB:#x}')
    a.op(f'v_mov_b32 v{Ln}, v{lane}')
    a.op(f'v_mov_b32 v{L16}, v{vl16}')
    a.op(f'v_mov_b32 v{Pl}, v{vpl}')
    for k in range(4):
        a.op(f'v_mov_b32 v{W4+k}, v{vwd+k}')
    a.op('s_lshl_b32 s42, s3, 14')
    a.op(f'v_add_u32 v{WR3}, s42, v{vwr}')
    poll(a, 'p_pollb', 12, vpl, 's43', 1, vpt)
    a.op('s_barrier')
    a.op('s_cmp_lg_u32 s3, 0')
    a.op('s_cbranch_scc1 p_s2')
    a.op('s_and_b32 s43, s2, 15')
    a.op('s_lshl_b32 s43, s43, 8')
    a.op(f's_add_u32 s43, s43, {SY2:#x}')
    a.op(f'v_lshlrev_b32 v{tA}, 12, v{lane}')
    a.op(f'v_mov_b32 v{tB}, 1')
    setexec(a, 8)
    a.op(f'buffer_atomic_add v{tB}, v{tA}, s[12:15], s43 offen sc1')
    a.op('s_mov_b64 exec, -1')
    a.label('p_s2', reset=True)
    stamp(a, 'sig2')
    BS = list(range(16, 28)) + list(range(32, 36))
    a.op(f's_add_u32 s43, s23, {SY2:#x}')
    a.op('s_lshl_b32 s16, s5, 2')
    a.op('s_add_u32 s16, s16, s3')
    a.op('s_lshl_b32 s16, s16, 16')
    a.op(f's_add_u32 s16, s16, {BH:#x}')
    for i in range(1, 16):
        a.op(f's_add_u32 s{BS[i]}, s16, {4096*i}')

    def bh_load(t, mi):
        a.op(f'buffer_load_dwordx4 {bh(mi,t)}, v{L16}, s[12:15], s{BS[8*mi+(t>>2)]} offen offset:{1024*(t&3)} sc1')
    NPRE = E('NPRE', '14')
    pre = [(lambda t=t, mi=mi: bh_load(t, mi)) for t in range(NPRE) for mi in range(2)]
    for _ in range(E('PB', '12')):
        pre.pop(0)()
    a.sprinkle = (E('SPR3', '6'), pre)
    wd_reads(10, 20, 246)
    a.op(f'v_bfe_u32 v{u0}, v{Ln}, 2, 2')
    a.op(f'v_mul_u32_u24 v{vsrc}, {HS}, v{u0}')
    a.op(f'v_lshrrev_b32 v{u1}, 4, v{Ln}')
    a.op(f'v_lshl_add_u32 v{vsrc}, v{u1}, 6, v{vsrc}')
    a.op(f'v_and_b32 v{u1}, 3, v{Ln}')
    a.op(f'v_lshl_add_u32 v{vsrc}, v{u1}, 4, v{vsrc}')
    for q_ in range(1, 4):
        a.op(f'v_add_u32 v{vsrc+q_}, {q_*(4*HS-1024)}, v{vsrc}')
    a.op('s_lshl_b32 s8, s4, 8')
    a.op(f's_add_u32 s8, s8, {HT:#x}')
    a.op('s_lshl_b32 s10, s5, 2')
    a.op('s_add_u32 s10, s10, s3')
    a.op(f's_mul_i32 s10, s10, {8*HS}')
    a.op('s_add_u32 s10, s10, s8')
    a.op(f's_add_u32 s11, s57, {SQX}')
    a.op(f's_mul_i32 s9, s3, {16*HS}')
    a.op('s_add_u32 s8, s8, s9')
    a.op('s_lshl_b32 s9, s3, 12')
    a.op(f'v_lshrrev_b32 v{u0}, 5, v{Ln}')
    a.op(f'v_lshlrev_b32 v{adr}, 11, v{u0}')
    a.op(f'v_bfe_u32 v{u1}, v{Ln}, 2, 2')
    a.op(f'v_lshl_add_u32 v{adr}, v{u1}, 6, v{adr}')
    a.op(f'v_bfe_u32 v{u1}, v{Ln}, 4, 1')
    a.op(f'v_lshl_add_u32 v{adr}, v{u1}, 5, v{adr}')
    a.op(f'v_and_b32 v{u1}, 3, v{Ln}')
    a.op(f'v_lshl_add_u32 v{adr}, v{u1}, 3, v{adr}')
    a.op(f'v_add_u32 v{adr2}, 0x10000, v{adr}')
    a.op('s_lshl_b32 s44, s3, 8')
    a.op(f's_add_u32 s44, s44, {SQX}')
    a.op(f'v_add_u32 v{adq}, s44, v{adr}')
    a.op(f'v_and_b32 v{u1}, 31, v{Ln}')
    a.op(f'v_lshlrev_b32 v{vx}, 2, v{u1}')
    a.op(f'v_lshrrev_b32 v{u0}, 3, v{Ln}')
    a.op(f'v_lshlrev_b32 v{vsq}, 9, v{u0}')
    a.op(f'v_and_b32 v{u0}, 7, v{Ln}')
    a.op(f'v_lshl_add_u32 v{vsq}, v{u0}, 4, v{vsq}')
    a.op(f'v_lshlrev_b32 v{vsx}, 4, v{u0}')
    a.op(f'v_bfe_u32 v{u0}, v{Ln}, 4, 1')
    a.op(f'v_lshl_add_u32 v{vsx}, v{u0}, 3, v{vsx}')
    a.op(f'v_lshrrev_b32 v{u0}, 5, v{Ln}')
    a.op(f'v_lshl_add_u32 v{vsx}, v{u0}, 2, v{vsx}')
    a.op('s_lshl_b32 s44, s3, 7')
    a.op(f's_add_u32 s45, s44, {RX}')
    a.op(f'v_add_u32 v{vsx}, s45, v{vsx}')
    a.op('s_lshl_b32 s40, s4, 13')
    a.op('s_add_u32 s40, s40, s44')
    a.op(f's_add_u32 s40, s40, {SSQ:#x}')
    a.op('s_lshl_b32 s41, s5, 9')
    a.op('s_add_u32 s41, s41, s40')
    a.op('s_add_u32 s56, s40, 4096')
    a.op('s_lshr_b32 s44, s3, 1')
    a.op('s_mul_i32 s45, s3, 28')
    for bn in range(2):
        a.op(f's_xor_b32 s46, s44, {1-bn}')
        a.op('s_lshl_b32 s47, s6, 1')
        a.op('s_add_u32 s46, s46, s47')
        a.op('s_mul_i32 s46, s46, 112')
        a.op('s_add_u32 s46, s46, s45')
        a.op('s_lshl_b32 s46, s46, 10')
        a.op(f's_add_u32 s46, s46, {HG:#x}')
        a.op(f'v_add_u32 v{vh+bn}, s46, v{L16}')
    a.sprinkle = None
    print('pre leftover', len(pre))
    while pre:
        pre.pop(0)()
    a.op('s_waitcnt lgkmcnt(0)')
    a.op('s_cmp_lg_u32 s3, 0')
    a.op('s_cbranch_scc1 p_w2')
    sv = poll(a, 'p_poll2', 12, Pl, 's43', 16, Pt)
    a.vmseq -= 1
    a.label('p_w2', reset=True)
    a.vm = sv
    a.op('s_barrier')
    stamp(a, 'seen2')

    acc = lambda mi, s: ACC + (mi * 4 + s) * 16
    TK = E('TK', '12')
    T0 = 32 - TK
    RAH = 7
    gtok = {}

    def dma_group(gr):
        def f(q_):
            def go():
                if q_ == 0:
                    a.op('s_mov_b32 m0, s9')
                    a.op('s_add_u32 s9, s9, 16384')
                a.op(f'buffer_load_dwordx4 v{vsrc+q_}, s[12:15], s8 offen offset:{1024*q_} sc1 lds')
                if q_ == 3:
                    a.op(f's_add_u32 s8, s8, {64*HS}')
                    gtok[gr] = a.vm_tok()
            return go
        return [f(q_) for q_ in range(4)]

    G0 = E('G0', '3')
    for f in dma_group(0):
        f()
    a.op('s_mov_b32 m0, s11')
    a.op('s_nop 0')
    for q_ in range(2):
        a.op(f'buffer_load_dwordx4 v{vsrc+q_}, s[12:15], s10 offen offset:{1024*q_} sc1 lds')
    for gr in range(1, G0):
        for f in dma_group(gr):
            f()
    a.op('s_cmp_ge_u32 s5, 14')
    a.op('s_cbranch_scc1 p_hpath')
    state0 = ([list(x) for x in a.vm], a.vmseq, dict(gtok))

    def gemm1(glu):
        tag = 'g' if glu else 'h'
        units = [(t, s) for t in range(T0) for s in range(4)] + [(t, s) for s in range(4) for t in range(T0, 32)]
        NU = len(units)
        S = {'avail': 0, 'gap': 0, 'rstd': not glu, 'last_vm': -9, 'free': False}
        last_unit_of_tile = {s: max(i for i, u in enumerate(units) if u[1] == s) for s in range(4)}
        last_unit_of_step = {t: max(i for i, u in enumerate(units) if u[0] == t) for t in range(32)}
        issue_gap = {gr: -20 for gr in range(G0)}
        LAT = E('LAT', '36')

        def sync_upto(gr):
            a.wait_vm_tok(gtok[gr], force=True)
            a.op('s_barrier')
            S['avail'] = 4 * (gr + 1)

        def rd(dst, t, s, q_):
            if t >= S['avail']:
                sync_upto(t // 4)
            a.op(f'ds_read_b64_tr_b16 {vr(dst+2*q_,2)}, v{adr if t < 16 else adr2} offset:{(t&15)*4096+1024*q_+256*s}')

        qd, qs, qe, qw, qb = [], [], [], [], []
        VP = E('VMP', '2')
        vm_ok = lambda: S['gap'] - S['last_vm'] >= VP and len(a.vm) < 60

        def vmwrap(fn, gr=None):
            def go():
                fn()
                S['last_vm'] = S['gap']
                if gr is not None:
                    issue_gap[gr] = S['gap']
            return go
        loads = []
        for gr in range(G0, 8):
            for q_, f in enumerate(dma_group(gr)):
                loads.append((min(4 * gr, T0) - 0.5, Item(8 + (8 if q_ == 0 else 0) + (4 if q_ == 3 else 0),
                                                           vmwrap(f, gr if q_ == 3 else None), cond=vm_ok)))
        qd = [x[1] for x in loads]
        for t in range(NPRE, 32):
            for mi in range(2):
                rdy = 2 * last_unit_of_step[t - NST] + 2 if t >= NST else 0
                qb.append(Item(8, vmwrap(lambda t=t, mi=mi: bh_load(t, mi)), ready=rdy, cond=vm_ok))
        for k, f in enumerate(wd_dma_items(20, 28, 42, W4)):
            qw.append(Item(8 + (12 if k % 4 == 0 else 0), vmwrap(f), cond=lambda: vm_ok() and S['free'] and not qd and not qb))
        op = lambda txt: (lambda: a.op(txt))
        W = {}
        for tt in range(2):
            for q_ in range(2):
                qs.append(Item(4, op(f'ds_read_b64_tr_b16 {vr(SQ+4*tt+2*q_,2)}, v{adq} offset:{4096*tt+1024*q_}'),
                               cond=lambda: S['avail'] >= 8))

        def mark(key):
            def go():
                W[key] = S['gap']
            return Item(0, go)
        qs.append(mark('sqr'))
        for k in range(8):
            def u_(k=k):
                a.wait_lg(vr(SQ + k, 1))
                a.op(f'v_lshlrev_b32 v{tu}, 16, v{SQ+k}')
            qs.append(Item(4, u_, cond=lambda: S['gap'] >= W['sqr'] + 4))
            qs.append(Item(4, op(f'v_and_b32 v{tu+1}, 0xffff0000, v{SQ+k}')))
            if k == 0:
                qs.append(Item(4, op(f'v_mul_f32 v{ssq}, v{tu}, v{tu}')))
                qs.append(Item(4, op(f'v_mul_f32 v{ssq+1}, v{tu+1}, v{tu+1}')))
            else:
                qs.append(Item(4, op(f'v_fmac_f32 v{ssq}, v{tu}, v{tu}')))
                qs.append(Item(4, op(f'v_fmac_f32 v{ssq+1}, v{tu+1}, v{tu+1}')))
        qs.append(Item(4, op(f'v_add_f32 v{ssq}, v{ssq}, v{ssq+1}')))
        qs.append(Item(4, op(f'v_mov_b32 v{ssq+1}, v{ssq}')))
        qs.append(Item(12, op(f'v_permlane32_swap_b32 v{ssq}, v{ssq+1}')))
        qs.append(Item(4, op(f'v_add_f32 v{ssq}, v{ssq}, v{ssq+1}')))
        qs.append(Item(8, vmwrap(op(f'buffer_store_dword v{ssq}, v{vx}, s[12:15], s41 offen sc1'))))
        GQ = E('GQ', '120')
        if glu:
            def gl():
                a.op(f'buffer_load_dwordx4 {vr(SQ,4)}, v{vsq}, s[12:15], s40 offen sc1')
                a.op(f'buffer_load_dwordx4 {vr(SQ+4,4)}, v{vsq}, s[12:15], s56 offen sc1')
            qs.append(Item(16, vmwrap(gl), ready=GQ))
            qs.append(mark('gl'))

            def chk():
                a.wait_vm(vr(SQ, 8))
                a.op(f'v_min3_f32 v{tu}, v{SQ}, v{SQ+1}, v{SQ+2}')
                a.op(f'v_min3_f32 v{tu+1}, v{SQ+3}, v{SQ+4}, v{SQ+5}')
                a.op(f'v_min3_f32 v{tu}, v{tu}, v{SQ+6}, v{SQ+7}')
                a.op(f'v_min_f32 v{tu}, v{tu}, v{tu+1}')
            qs.append(Item(20, chk, cond=lambda: S['gap'] >= W['gl'] + LAT))

            def chk2():
                a.op(f'v_cmp_gt_f32 vcc, 0, v{tu}')
                a.op('s_nop 4')
                a.op('s_cbranch_vccnz p_sqretry')
                a.label('p_sqok')
            qs.append(Item(20, chk2))
            for k in range(4):
                qs.append(Item(4, op(f'v_add_f32 v{SQ+k}, v{SQ+k}, v{SQ+4+k}')))
            qs.append(Item(4, op(f'v_mov_b32 v{tu}, {f2u(1e-5)}')))
            qs.append(Item(4, op(f'v_add_u32 v{vx}, {RX}, v{vx}')))
            qs.append(Item(4, op(f'v_permlane32_swap_b32 v{SQ}, v{SQ+1}')))
            qs.append(Item(4, op(f'v_permlane32_swap_b32 v{SQ+2}, v{SQ+3}')))
            qs.append(Item(4, op(f'v_add_f32 v{SQ}, v{SQ}, v{SQ+1}')))
            qs.append(Item(4, op(f'v_add_f32 v{SQ+2}, v{SQ+2}, v{SQ+3}')))
            qs.append(Item(12, op(f'v_permlane16_swap_b32 v{SQ}, v{SQ+2}')))
            qs.append(Item(4, op(f'v_add_f32 v{SQ}, v{SQ}, v{SQ+2}')))
            qs.append(Item(12, op(f'v_add_f32_dpp v{SQ}, v{SQ}, v{SQ} row_ror:8 row_mask:0xf bank_mask:0xf')))
            qs.append(Item(4, op(f'v_fmamk_f32 v{SQ}, v{SQ}, {f2u(1/512)}, v{tu}')))

            def pub():
                a.op(f'ds_write_b32 v{vsx}, v{SQ}')
                W['tok'] = a.lg_tok()
                W['gap'] = S['gap']
            qs.append(Item(4, pub))
        else:
            qs.append(mark('gap'))

        def bar():
            if glu:
                a.wait_lg_tok(W['tok'])
            a.op('s_barrier')
            S['free'] = True
        qs.append(Item(8, bar, ready=2 * 64 + 4, cond=lambda: S['gap'] >= W['gap'] + 3))
        if glu:
            for s in range(4):
                qs.append(Item(4, op(f'ds_read_b32 v{rs+s}, v{vx} offset:{128*s}')))
            qs.append(mark('gap2'))
            for s in range(4):
                def rq(s=s):
                    a.wait_lg(vr(rs + s, 1))
                    a.op(f'v_rsq_f32 v{r2+s}, v{rs+s}')
                qs.append(Item(8, rq, cond=lambda: S['gap'] >= W['gap2'] + 3))
            for s in range(4):
                qs.append(Item(4, op(f'v_mul_f32 v{rs+s}, v{rs+s}, v{r2+s}')))
                qs.append(Item(4, op(f'v_mul_f32 v{r2+s}, {f2u(-math.log2(math.e))}, v{r2+s}')))

            def done():
                S['rstd'] = True
                print('  rstd at gap', S['gap'])
            qs.append(Item(0, done))
            DS = [43, 44, 45, 46]
            a.op('s_lshl_b32 s43, s5, 2')
            a.op('s_add_u32 s43, s43, s3')
            a.op('s_lshl_b32 s43, s43, 1')
            a.op('s_mul_i32 s44, s4, 448')
            a.op('s_add_u32 s43, s43, s44')
            a.op('s_lshl_b32 s43, s43, 10')
            a.op(f's_add_u32 s43, s43, {HG:#x}')
            for s in range(1, 4):
                a.op(f's_add_u32 s{DS[s]}, s43, {s*112*1024}')
            for s in range(4):
                rdy = 2 * last_unit_of_tile[s] + 2 + 3
                c = lambda: S['rstd']
                for mi in range(2):
                    Gq, U = acc(mi, s), acc(mi, s) + 8
                    o = OUT + 4 * ((2 * s + mi) & 3)
                    for half in range(2):
                        ks = range(4 * half, 4 * half + 4)
                        for k in ks:
                            qe.append(Item(4, op(f'v_mul_f32 v{Gq+k}, v{Gq+k}, v{r2+s}'), rdy, c))
                        for k in ks:
                            qe.append(Item(8, op(f'v_exp_f32 v{Gq+k}, v{Gq+k}'), rdy))
                        for k in ks:
                            qe.append(Item(4, op(f'v_fma_f32 v{Gq+k}, v{Gq+k}, v{rs+s}, v{rs+s}'), rdy))
                        for k in ks:
                            qe.append(Item(8, op(f'v_rcp_f32 v{Gq+k}, v{Gq+k}'), rdy))
                        for k in ks:
                            qe.append(Item(4, op(f'v_mul_f32 v{U+k}, v{U+k}, v{Gq+k}'), rdy))
                        for k in (2 * half, 2 * half + 1):
                            qe.append(Item(4, op(f'v_cvt_pk_bf16_f32 v{o+k}, v{U+2*k}, v{U+2*k+1}'), rdy))
                    qe.append(Item(8, op(f'buffer_store_dwordx4 {vr(o,4)}, v{L16}, s[12:15], s{DS[s]} offen offset:{1024*mi} sc1'), rdy))
        else:
            a.op(f'v_bfe_u32 v{u0}, v{Ln}, 3, 2')
            a.op(f'v_lshlrev_b32 v{u0}, 6, v{u0}')
            a.op(f'v_and_b32 v{u1}, 7, v{Ln}')
            a.op(f'v_lshl_add_u32 v{u0}, v{u1}, 2, v{u0}')
            a.op('s_lshl_b32 s43, s4, 10')
            a.op(f's_add_u32 s43, s43, {STAT:#x}')
            for s in range(4):
                a.op(f'buffer_load_dword v{rs+s}, v{u0}, s[12:15], s43 offen offset:{256*s} sc1')
            DS = [43, 44, 45, 46]
            a.op('s_sub_u32 s43, s5, 14')
            a.op('s_lshl_b32 s43, s43, 2')
            a.op('s_add_u32 s43, s43, s3')
            a.op('s_lshl_b32 s43, s43, 12')
            a.op('s_lshl_b32 s44, s4, 17')
            a.op('s_add_u32 s43, s43, s44')
            a.op(f's_add_u32 s43, s43, {HRES:#x}')
            for s in range(1, 4):
                a.op(f's_add_u32 s{DS[s]}, s43, {s*32768}')
            for s in range(4):
                rdy = 2 * last_unit_of_tile[s] + 2 + 3
                for mi in range(2):
                    A_ = acc(mi, s)
                    for half in range(2):
                        o = OUT + 4 * ((2 * mi + half) & 3)
                        for k in range(8 * half, 8 * half + 8):
                            def ad_(k=k, A_=A_, s=s):
                                a.wait_vm(vr(rs + s, 1))
                                a.op(f'v_add_f32 v{A_+k}, v{A_+k}, v{rs+s}')
                            qe.append(Item(4, ad_, rdy))
                        for k in range(4):
                            qe.append(Item(4, op(f'v_cvt_pk_bf16_f32 v{o+k}, v{A_+8*half+2*k}, v{A_+8*half+2*k+1}'), rdy))
                        qe.append(Item(8, op(f'buffer_store_dwordx4 {vr(o,4)}, v{L16}, s[12:15], s{DS[s]} offen offset:{2048*mi+1024*half} sc1'), rdy))

        buf = lambda u: BFR + 4 * (u % NBF)
        for u in range(RAH):
            for q_ in range(2):
                rd(buf(u), units[u][0], units[u][1], q_)
        stamp(a, 'loop0')
        BUD = E('BUD', '24')
        for u, (t, s) in enumerate(units):
            for mi in range(2):
                budget = BUD
                if mi == 0:
                    a.wait_lg(vr(buf(u), 4))
                a.wait_vm(bh(mi, t))
                c = '0' if t == 0 else vr(acc(mi, s), 16)
                a.op(f'v_mfma_f32_32x32x16_bf16 {vr(acc(mi,s),16)}, {bh(mi,t)}, {vr(buf(u),4)}, {c}')
                S['gap'] += 1
                if mi == 1:
                    budget -= 4
                ng = S['avail'] // 4
                if ng < 8 and ng in issue_gap and issue_gap[ng] + LAT <= S['gap']:
                    hi = ng
                    while hi + 1 in issue_gap and issue_gap[hi + 1] + LAT <= S['gap']:
                        hi += 1
                    sync_upto(hi)
                    budget -= 8
                if u + RAH < NU:
                    rd(buf(u + RAH), units[u + RAH][0], units[u + RAH][1], mi)
                    budget -= 4
                progress = True
                while progress:
                    progress = False
                    for qq in (qd, qb, qs, qe, qw):
                        if qq and qq[0].cost <= budget and qq[0].ready <= S['gap'] and (qq[0].cond is None or qq[0].cond()):
                            it = qq.pop(0)
                            it.fn()
                            budget -= it.cost
                            progress = True
                            break
        stamp(a, 'loop1')
        print('leftover', tag, 'dma', len(qd), 'bh', len(qb), 'ssq', len(qs), 'epi', len(qe), 'wd', len(qw))
        assert not qd and not qb and not qs
        for it in qw + qe:
            it.fn()
        stamp(a, 'epi')
        a.op('s_waitcnt vmcnt(0)')

    gemm1(True)
    a.op('s_branch p_sync3')
    a.label('p_sqretry', reset=True)
    a.op('s_mov_b32 s58, 0')
    a.label('p_sqloop', reset=True)
    a.op(f'buffer_load_dwordx4 {vr(SQ,4)}, v{vsq}, s[12:15], s40 offen sc1')
    a.op(f'buffer_load_dwordx4 {vr(SQ+4,4)}, v{vsq}, s[12:15], s56 offen sc1')
    a.op('s_add_u32 s58, s58, 1')
    a.op('s_waitcnt vmcnt(0)')
    a.op(f's_cmp_ge_u32 s58, {SPIN_MAX}')
    a.op('s_cbranch_scc1 p_sqok')
    a.op(f'v_min3_f32 v{tu}, v{SQ}, v{SQ+1}, v{SQ+2}')
    a.op(f'v_min3_f32 v{tu+1}, v{SQ+3}, v{SQ+4}, v{SQ+5}')
    a.op(f'v_min3_f32 v{tu}, v{tu}, v{SQ+6}, v{SQ+7}')
    a.op(f'v_min_f32 v{tu}, v{tu}, v{tu+1}')
    a.op(f'v_cmp_gt_f32 vcc, 0, v{tu}')
    a.op('s_nop 4')
    a.op('s_cbranch_vccnz p_sqloop')
    a.op('s_branch p_sqok')
    a.label('p_hpath', reset=True)
    a.vm, a.vmseq = [list(x) for x in state0[0]], state0[1]
    gtok.clear()
    gtok.update(state0[2])
    gemm1(False)
    a.label('p_sync3', reset=True)
    stamp(a, 'ack3')
    a.op('s_barrier')
    a.op('s_cmp_lg_u32 s3, 0')
    a.op('s_cbranch_scc1 p_f3')
    a.op('s_lshl_b32 s43, s4, 4')
    a.op('s_add_u32 s43, s43, s5')
    a.op('s_lshl_b32 s43, s43, 8')
    a.op(f's_add_u32 s43, s43, {SY3:#x}')
    a.op(f'v_mov_b32 v{u0}, 0')
    a.op(f'v_mov_b32 v{u1}, 1')
    a.op('s_mov_b64 exec, 1')
    a.op(f'buffer_store_dword v{u1}, v{u0}, s[12:15], s43 offen sc1')
    a.op('s_mov_b64 exec, -1')
    a.label('p_f3', reset=True)
    wd_reads(20, 28, WR3)
    TS, KS, HSS = 4224, 1056, 544
    RB = 65536
    wa = vsrc
    ra_, vo, vhr = adr, adr2, adq
    a.op(f'v_and_b32 v{u0}, 31, v{Ln}')
    a.op(f'v_lshlrev_b32 v{u0}, 4, v{u0}')
    a.op(f'v_lshrrev_b32 v{u1}, 5, v{Ln}')
    a.op(f'v_mul_u32_u24 v{u1}, {HSS}, v{u1}')
    a.op(f'v_add_u32 v{u0}, v{u0}, v{u1}')
    a.op(f's_mul_i32 s43, s3, {4*TS}')
    a.op(f's_add_u32 s43, s43, {RB}')
    for bn in range(2):
        for am in range(2):
            a.op(f's_xor_b32 s44, s3, {am | ((1-bn) << 1)}')
            a.op(f's_mul_i32 s44, s44, {TS}')
            a.op('s_add_u32 s44, s44, s43')
            a.op(f'v_add_u32 v{wa+2*bn+am}, s44, v{u0}')
    a.op(f'v_lshrrev_b32 v{u0}, 3, v{Ln}')
    a.op(f'v_lshl_add_u32 v{u0}, s3, 3, v{u0}')
    a.op(f'v_lshlrev_b32 v{ra_}, 4, v{u0}')
    a.op(f'v_lshlrev_b32 v{vhr}, 4, v{u0}')
    a.op(f'v_lshlrev_b32 v{vo}, 10, v{u0}')
    a.op(f'v_and_b32 v{u1}, 7, v{Ln}')
    a.op(f'v_lshl_add_u32 v{vo}, v{u1}, 4, v{vo}')
    a.op(f'v_bfe_u32 v{u1}, v{Ln}, 2, 1')
    a.op(f'v_mul_u32_u24 v{u0}, {TS}, v{u1}')
    a.op(f'v_add_u32 v{ra_}, v{ra_}, v{u0}')
    a.op(f'v_lshl_add_u32 v{vhr}, v{u1}, 11, v{vhr}')
    a.op(f'v_bfe_u32 v{u1}, v{Ln}, 1, 1')
    a.op(f'v_mul_u32_u24 v{u0}, {HSS}, v{u1}')
    a.op(f'v_add_u32 v{ra_}, v{ra_}, v{u0}')
    a.op(f'v_lshl_add_u32 v{vhr}, v{u1}, 9, v{vhr}')
    a.op(f'v_and_b32 v{u1}, 1, v{Ln}')
    a.op(f'v_mul_u32_u24 v{u0}, {2*KS}, v{u1}')
    a.op(f'v_add_u32 v{ra_}, v{ra_}, v{u0}')
    a.op(f'v_lshl_add_u32 v{vhr}, v{u1}, 10, v{vhr}')
    a.op(f'v_add_u32 v{ra_}, {RB}, v{ra_}')
    a.op('s_lshl_b32 s16, s6, 16')
    a.op('s_lshl_b32 s17, s7, 7')
    a.op('s_add_u32 s17, s16, s17')
    a.op('s_add_u32 s18, s17, 32768')
    a.op('s_lshl_b32 s19, s7, 12')
    a.op('s_add_u32 s19, s19, s16')
    a.op(f's_add_u32 s19, s19, {HRES:#x}')
    a.op('s_add_u32 s20, s19, 32768')
    a.op('s_lshr_b32 s43, s6, 1')
    a.op('s_lshl_b32 s43, s43, 12')
    a.op(f's_add_u32 s43, s43, {SY3:#x}')
    a.op('s_waitcnt lgkmcnt(0)')
    a.op('s_cmp_lg_u32 s3, 0')
    a.op('s_cbranch_scc1 p_w3')
    poll(a, 'p_poll3', 12, Pl, 's43', 1, Pt)
    a.label('p_w3', reset=True)
    a.op('s_barrier')
    stamp(a, 'seen3')
    A2 = lambda am, bn: (2 * bn + am) * 16
    RING0, NR = 64, 32
    hres = 192
    seq = [(bn, i) for bn in range(2) for i in range(28)]
    fr = lambda k: vr(RING0 + 4 * (k % NR), 4)

    def hload(k):
        bn, i = seq[k]
        a.op(f'buffer_load_dwordx4 {fr(k)}, v{vh+bn}, s[12:15], s{48+(i>>2)} offen offset:{1024*(i&3)} sc1')
    PRE = E('PRE', '16')
    for k in range(PRE):
        hload(k)
    pend = []
    for k, (bn, i) in enumerate(seq):
        a.wait_vm(fr(k))
        for am in range(2):
            c = '0' if i == 0 else vr(A2(am, bn), 16)
            a.op(f'v_mfma_f32_32x32x16_bf16 {vr(A2(am,bn),16)}, {ar(wd(i,am),4)}, {fr(k)}, {c}')
            if am == 0 and k + PRE < 56:
                hload(k + PRE)
            if am == 0 and k + PRE == 56:
                a.op(f'buffer_load_dwordx4 {vr(hres,4)}, v{vhr}, s[12:15], s19 offen sc1')
                a.op(f'buffer_load_dwordx4 {vr(hres+4,4)}, v{vhr}, s[12:15], s20 offen sc1')
            if am == 1 and pend and k >= 31:
                pend.pop(0)()
        if k == 27:
            for am in range(2):
                for kk in range(4):
                    pend.append(lambda am=am, kk=kk: a.op(
                        f'ds_write_b128 v{wa+am}, {vr(A2(am,0)+4*kk,4)} offset:{kk*KS}'))
    stamp(a, 'g2')
    assert not pend
    hf = 0
    a.wait_vm(vr(hres, 8))
    for am in range(2):
        for kk in range(4):
            a.op(f'ds_write_b128 v{wa+2+am}, {vr(A2(am,1)+4*kk,4)} offset:{kk*KS}')
    for k in range(8):
        a.op(f'v_lshlrev_b32 v{hf+2*k}, 16, v{hres+k}')
        a.op(f'v_and_b32 v{hf+2*k+1}, 0xffff0000, v{hres+k}')
    a.op('s_waitcnt lgkmcnt(0)')
    a.op('s_barrier')
    R = lambda it, src, x: RING0 + ((it * 4 + src) * 2 + x) * 4
    for it in range(2):
        for src in range(4):
            for x in range(2):
                a.op(f'ds_read_b128 {vr(R(it,src,x),4)}, v{ra_} offset:{src*4*TS+it*2*TS+x*KS}')
    for it in range(2):
        for src in range(4):
            for x in range(2):
                a.wait_lg(vr(R(it, src, x), 4))
                for h in range(2):
                    y = hf + 8 * it + 4 * x + 2 * h
                    a.op(f'v_pk_add_f32 {vr(y,2)}, {vr(y,2)}, {vr(R(it,src,x)+2*h,2)}')
        for k in range(4):
            a.op(f'v_cvt_pk_bf16_f32 v{hres+4*it+k}, v{hf+8*it+2*k}, v{hf+8*it+2*k+1}')
        a.op(f'buffer_store_dwordx4 {vr(hres+4*it,4)}, v{vo}, s[36:39], s{17+it} offen')
    stamp(a, 'end')
    prof_flush(a)
    a.label('p_done')
    a.op('s_endpgm')


def main():
    a = Asm()
    gen_p(a)
    hdr = open('cdna_kernels/' + NAME + '.s.ref').read().split('; Override launch')[0]
    if E('LIST', '0'):
        hdr += f'; @launch kernel={NAME}_kernel grid=(256,1,1) block=(256,1,1) lds={LDS_BYTES}\n'
    else:
        hdr += f'; @launch grid=(256,1,1) block=(256,1,1) lds={LDS_BYTES}\n'
    txt = hdr + '.amdgcn_target "amdgcn-amd-amdhsa--gfx950"\n.text\n' + a.text()
    txt += '.section .rodata,"a"\n'
    txt += kd(NAME + '_kernel', 512, 256)
    out = sys.argv[1] if len(sys.argv) > 1 else 'cdna_kernels/' + NAME + '.s'
    open(out, 'w').write(txt)
    print('nops inserted', a.nops, 'bytes', len(txt), 'lds', LDS_BYTES)


if __name__ == '__main__':
    main()
```
